```python
import torch

def _softmax(x, axis=-1):
    return torch.softmax(x, dim=axis)
def _gelu(x):
    return torch.nn.functional.gelu(x, approximate="tanh")
def _silu(x):
    return torch.nn.functional.silu(x)
def _sigmoid(x):
    return torch.sigmoid(x)
def _layernorm(x, axis=-1, eps=1e-5):
    m = x.mean(dim=axis, keepdim=True)
    v = x.var(dim=axis, keepdim=True, unbiased=False)
    return (x - m) / torch.sqrt(v + eps)
def _scatter_add(tgt, idx, src, axis=0):
    return tgt.clone().index_add_(axis, idx, src)
def _segment_sum(src, seg, n):
    out = torch.zeros((n,) + src.shape[1:], dtype=src.dtype)
    return out.index_add_(0, seg, src)
def _pad(x, pw):
    flat = tuple(v for pair in reversed(pw) for v in pair)
    return torch.nn.functional.pad(x, flat)

kernel_name = 'recurrent_scan__sliding_block_cached__dense_activation_squared_relu__prompt'

def setup_inputs():

    _w = (lambda a: (lambda t: t.to(torch.bfloat16) if t.is_floating_point() else t)(torch.as_tensor(a)))
    def _A_setup():
        B, Sq, D = 1, 2048, 640
        Hq, Hkv, Sk, Dh = 32, 32, 2048, 192
        assert Hq % Hkv == 0, (Hq, Hkv)
        return {
            "x": _w((lambda *s: torch.randn(*s, dtype=torch.bfloat16) * 0.05)(B, Sq, D)),
            "k_cache": _w((lambda *s: torch.randn(*s, dtype=torch.bfloat16) * 0.8)(B, Hkv, Sk, Dh)),
            "v_cache": _w((lambda *s: torch.randn(*s, dtype=torch.bfloat16) * 0.2)(B, Hkv, Sk, Dh)),
            "wq": _w((lambda *s: torch.randn(*s, dtype=torch.bfloat16) * 0.8)(D, Hq * Dh) * (D ** -0.5)),
            "wo": _w((lambda *s: torch.randn(*s, dtype=torch.bfloat16) * 0.2)(Hq * Dh, D) * ((Hq * Dh) ** -0.5)),
        }
    _A_in = _A_setup()

    def _B_setup():
        B, S, D, F = 1, 2048, 640, 1536
        return {
            "x": _w((lambda *s: torch.randn(*s, dtype=torch.bfloat16) * 0.05)(B, S, D)),
            "w1": _w((lambda *s: torch.randn(*s, dtype=torch.bfloat16) * 0.1)(D, F)),
            "b1": _w((lambda *s: torch.randn(*s, dtype=torch.bfloat16) * 0.8)(F)),
            "w2": _w((lambda *s: torch.randn(*s, dtype=torch.bfloat16) * 0.1)(F, D)),
            "b2": _w((lambda *s: torch.randn(*s, dtype=torch.bfloat16) * 12.8)(D)),
        }
    _B_in = _B_setup()

    return {
        "A_x": _A_in["x"],
        "A_k_cache": _A_in["k_cache"],
        "A_v_cache": _A_in["v_cache"],
        "A_wq": _A_in["wq"],
        "A_wo": _A_in["wo"],
        "B_x": _B_in["x"],
        "B_w1": _B_in["w1"],
        "B_b1": _B_in["b1"],
        "B_w2": _B_in["w2"],
        "B_b2": _B_in["b2"],
    }

def reference(A_x, A_k_cache, A_v_cache, A_wq, A_wo, B_x, B_w1, B_b1, B_w2, B_b2):
    def _A_ref(x, k_cache, v_cache, wq, wo):
        B, Sq, D = x.shape
        Hq, Dh = 32, 192
        Hkv, Sk = k_cache.shape[1], k_cache.shape[2]
        W = min(4096, max(256, Sk // 4))
        rep = Hq // Hkv
        q = (lambda x, *d: x.permute(*d))((x @ wq).reshape(B, Sq, Hq, Dh), 0, 2, 1, 3)
        k = (lambda x, n, axis: torch.repeat_interleave(x, n, dim=axis))(k_cache[:, :, Sk - W:, :], rep, axis=1)
        v = (lambda x, n, axis: torch.repeat_interleave(x, n, dim=axis))(v_cache[:, :, Sk - W:, :], rep, axis=1)
        scores = torch.einsum("bhqd,bhkd->bhqk", q, k) * (Dh ** -0.5)
        p = _softmax(scores, axis=-1)
        o = torch.einsum("bhqk,bhkd->bhqd", p, v)
        return (lambda x, *d: x.permute(*d))(o, 0, 2, 1, 3).reshape(B, Sq, Hq * Dh) @ wo

    def _B_ref(x, w1, b1, w2, b2):
        h = torch.einsum("bsd,df->bsf", x, w1) + b1
        zero = torch.zeros_like(h)
        r = torch.where(h > zero, h, zero)
        h = r * r
        out = torch.einsum("bsf,fd->bsd", h, w2) + b2
        return out

    x = A_x
    xn = _layernorm(x, axis=-1)
    s = _A_ref(xn, A_k_cache, A_v_cache, A_wq, A_wo)
    g = _silu(_B_ref(xn, B_w1, B_b1, B_w2, B_b2))
    return x + s * g
```

```python
class I:
    def __init__(s, t, vm=None, lg=None): s.t, s.vm, s.lg = t, vm, lg
class W:
    def __init__(s, vm=(), lg=(), full=False):
        s.vm = [vm] if isinstance(vm, str) else list(vm)
        s.lg = [lg] if isinstance(lg, str) else list(lg)
        s.full = full; s.nvm = None; s.nlg = None; s.uvm = False; s.ulg = False
def flat(x):
    if isinstance(x, (list, tuple)):
        for y in x: yield from flat(y)
    elif isinstance(x, str):
        for l in x.split("\n"):
            if l.strip(): yield I(l.strip())
    elif x is not None: yield x
def classify(it):
    t = it.t
    if t.startswith("buffer_") or t.startswith("global_"):
        if it.vm is None: it.vm = "_"
    if t.startswith("ds_"):
        if it.lg is None: it.lg = "_"
class Kernel:
    def __init__(s, name, vgpr, accum):
        s.name, s.vgpr, s.accum = name, vgpr, accum
        s.blocks = {}; s.order = []; s.cur = None; s.traces = []
    def block(s, n, align=None):
        s.blocks[n] = []; s.order.append((n, align)); s.cur = s.blocks[n]
    def a(s, *x):
        for it in flat(x):
            if isinstance(it, I): classify(it)
            s.cur.append(it)
    def weave(s, mf, fill):
        for i, m in enumerate(mf):
            s.a(m); s.a(fill.get(i, []))
        assert all(0 <= k < len(mf) for k in fill), sorted(fill)
    def solve(s):
        for ps in (0, 1):
            for tr in s.traces:
                n = {"vm": 0, "lg": 0}; last = {"vm": {}, "lg": {}}; done = {"vm": 0, "lg": 0}
                for b in tr:
                    for it in s.blocks[b]:
                        if isinstance(it, I):
                            for c in ("vm", "lg"):
                                tg = getattr(it, c)
                                if tg is not None: n[c] += 1; last[c][tg] = n[c]
                        elif it.full:
                            done = dict(n)
                        else:
                            for c, cap in (("vm", 63), ("lg", 15)):
                                tags = getattr(it, c)
                                if not tags: continue
                                for t in tags: assert t in last[c], (s.name, b, t)
                                need = max(last[c][t] for t in tags)
                                if ps == 0:
                                    if need > done[c]:
                                        v = min(n[c] - need, cap); o = getattr(it, "n" + c)
                                        setattr(it, "n" + c, v if o is None else min(o, v))
                                elif need > done[c]:
                                    setattr(it, "u" + c, True)
                                    done[c] = max(done[c], n[c] - getattr(it, "n" + c))
                                    assert done[c] >= need
    def text(s):
        s.solve()
        seen = set(b for tr in s.traces for b in tr)
        L = [f".globl {s.name}", ".p2align 8", f".type {s.name},@function", f"{s.name}:"]
        for n, al in s.order:
            if al: L.append(f".p2align {al}")
            L.append(f"{s.name[:2]}_{n}:")
            for it in s.blocks[n]:
                if isinstance(it, I): L.append("  " + it.t)
                elif it.full: L.append("  s_waitcnt vmcnt(0) lgkmcnt(0)")
                else:
                    assert n in seen, n
                    p = []
                    if it.uvm: p.append(f"vmcnt({it.nvm})")
                    if it.ulg: p.append(f"lgkmcnt({it.nlg})")
                    if p: L.append("  s_waitcnt " + " ".join(p))
        return "\n".join(L)
    def desc(s):
        return f""".p2align 6
.amdhsa_kernel {s.name}
  .amdhsa_next_free_vgpr {s.vgpr}
  .amdhsa_next_free_sgpr 102
  .amdhsa_accum_offset {s.accum}
  .amdhsa_group_segment_fixed_size 0
  .amdhsa_kernarg_size 104
  .amdhsa_user_sgpr_count 2
  .amdhsa_user_sgpr_kernarg_segment_ptr 1
  .amdhsa_system_sgpr_workgroup_id_x 1
.end_amdhsa_kernel"""
def r(f, b, n=1): return f"{f}{b}" if n == 1 else f"{f}[{b}:{b+n-1}]"
def mfma(d, a, b, c): return f"v_mfma_f32_16x16x32_bf16 {d}, {a}, {b}, {c}"
def srd(d, p, off, nrec):
    return [f"s_add_u32 s{d}, s{p}, {off}", f"s_addc_u32 s{d+1}, s{p+1}, 0", f"s_mov_b32 s{d+2}, {nrec}", f"s_mov_b32 s{d+3}, 0x20000"]
import struct
def f32(x): return "0x%08x" % struct.unpack("<I", struct.pack("<f", x))[0]
```

```python
import sys, math
sys.path.insert(0, "dev")
from asmlib import *
NAME = "recurrent_scan__sliding_block_cached__dense_activation_squared_relu__prompt"
CS = math.log2(math.e) / math.sqrt(192.0)
XS, CNT, AM, EX = 0, 0x300000, 0x400000, 0x2400000
AMSZ = 64 * 240 * 2048
EXSZ = 64 * 4 * 4 * 4 * 3072
OPT = dict(mimic=1)
def divc(dst, src, d, mx):
    m = (65536 + d - 1) // d
    assert all((x * m) >> 16 == x // d for x in range(mx))
    return [f"v_mul_u32_u24 {dst}, {m}, {src}", f"v_lshrrev_b32 {dst}, 16, {dst}"]
def xred(op, x, t):
    return ["s_nop 1", f"v_permlane32_swap_b32 {x[0]}, {x[1]}", f"v_permlane32_swap_b32 {x[2]}, {x[3]}", "s_nop 1",
            f"{op} {x[0]}, {x[0]}, {x[1]}", f"{op} {x[2]}, {x[2]}, {x[3]}", "s_nop 1",
            f"v_permlane16_swap_b32 {x[0]}, {x[2]}", "s_nop 1", f"{op} {x[0]}, {x[0]}, {x[2]}"]
def xbcast(x):
    return [f"v_mov_b32 {x[2]}, {x[0]}", "s_nop 1", f"v_permlane16_swap_b32 {x[0]}, {x[2]}", "s_nop 1",
            f"v_mov_b32 {x[1]}, {x[0]}", f"v_mov_b32 {x[3]}, {x[2]}", "s_nop 1",
            f"v_permlane32_swap_b32 {x[0]}, {x[1]}", f"v_permlane32_swap_b32 {x[2]}, {x[3]}", "s_nop 1"]

def k0():
    K = Kernel("k0_kernel", 72, 72); a = K.a
    K.block("start")
    a("s_cmp_ge_u32 s2, 128\ns_cbranch_scc1 k0_end")
    a("s_load_dwordx2 s[4:5], s[0:1], 0\ns_load_dwordx2 s[6:7], s[0:1], 96")
    a("v_and_b32 v1, 15, v0\nv_lshrrev_b32 v2, 4, v0\nv_lshrrev_b32 v3, 6, v0\nv_and_b32 v4, 3, v2")
    a("v_mul_u32_u24 v5, 1280, v1\nv_mul_u32_u24 v6, 320, v3\nv_lshlrev_b32 v4, 4, v4\nv_add3_u32 v5, v5, v6, v4")
    a("s_mul_i32 s3, s2, 20480\ns_waitcnt lgkmcnt(0)")
    a(srd(8, 4, 0, 2048 * 1280), srd(12, 6, 0, AM))
    for i in range(5): a(I(f"buffer_load_dwordx4 v[{52+4*i}:{55+4*i}], v5, s[8:11], s3 offen offset:{64*i}", vm=f"x{i}"))
    a("v_lshlrev_b32 v6, 6, v1\nv_lshl_add_u32 v7, v2, 2, v6")
    a("v_and_b32 v8, 63, v0\nv_lshlrev_b32 v8, 4, v8\nv_mul_u32_u24 v3, 20480, v3\nv_add_u32 v8, v8, v3")
    a("s_lshr_b32 s16, s2, 2\ns_mul_i32 s16, s16, 81920\ns_and_b32 s17, s2, 3\ns_lshl_b32 s17, s17, 10\ns_add_u32 s16, s16, s17")
    for i in range(5):
        a(W(vm=f"x{i}"))
        for j in range(4):
            a(f"v_lshlrev_b32 v{12+8*i+2*j}, 16, v{52+4*i+j}\nv_and_b32 v{13+8*i+2*j}, 0xffff0000, v{52+4*i+j}")
    def allsum(off):
        a(f"v_add_f32 v9, v9, v10\nds_write_b32 v7, v9 offset:{off}\ns_waitcnt lgkmcnt(0)\ns_barrier")
        for j in range(4): a(f"ds_read_b128 v[{52+4*j}:{55+4*j}], v6 offset:{off+16*j}")
        a("s_waitcnt lgkmcnt(0)")
        for n in (8, 4, 2, 1):
            for j in range(n): a(f"v_add_f32 v{52+j}, v{52+j}, v{52+j+n}")
        a(f"v_mul_f32 v52, {f32(1/640)}, v52")
    a("v_add_f32 v9, v12, v14\nv_add_f32 v10, v13, v15")
    for j in range(4, 40): a(f"v_add_f32 v{9+j%2}, v{9+j%2}, v{12+j}")
    allsum(0)
    a("v_mov_b32 v11, v52\nv_mov_b32 v9, 0\nv_mov_b32 v10, 0")
    for j in range(40):
        a(f"v_sub_f32 v{60+j%4}, v{12+j}, v11\nv_fmac_f32 v{9+j%2}, v{60+j%4}, v{60+j%4}")
    allsum(1024)
    rb = lambda x: f"v_cvt_pk_bf16_f32 {x}, {x}, {x}\nv_and_b32 {x}, 0xffff0000, {x}"
    a(rb("v11"), rb("v52"), f"v_add_f32 v52, {f32(1e-5)}, v52", rb("v52"), "v_sqrt_f32 v52, v52\ns_nop 0", rb("v52"))
    a(f"v_rcp_f32 v52, v52\ns_nop 0\nv_mul_f32 v52, {f32(CS)}, v52")
    for i in range(5):
        for j in range(4):
            x = 12 + 8 * i + 2 * j
            a(f"v_sub_f32 v{x}, v{x}, v11\nv_sub_f32 v{x+1}, v{x+1}, v11")
            if OPT["mimic"]: a(f"v_cvt_pk_bf16_f32 v{x+1}, v{x}, v{x+1}\nv_lshlrev_b32 v{x}, 16, v{x+1}\nv_and_b32 v{x+1}, 0xffff0000, v{x+1}")
            a(f"v_mul_f32 v{x}, v{x}, v52\nv_mul_f32 v{x+1}, v{x+1}, v52\nv_cvt_pk_bf16_f32 v{12+8*i+j}, v{x}, v{x+1}")
        a(f"buffer_store_dwordx4 v[{12+8*i}:{15+8*i}], v8, s[12:15], s16 offen\ns_add_u32 s16, s16, 4096")
    a(f"s_lshl_b32 s17, s2, 8\ns_add_u32 s17, s17, {CNT}\nv_lshlrev_b32 v9, 2, v0\nv_mov_b32 v10, 0\nv_cmp_gt_u32 vcc, 64, v0")
    a("s_and_saveexec_b64 s[18:19], vcc\nbuffer_store_dword v10, v9, s[12:15], s17 offen\ns_mov_b64 exec, s[18:19]")
    K.block("end"); a("s_endpgm")
    K.traces = [["start", "end"]]
    return K

def k1():
    K = Kernel("k1_kernel", 512, 256); a = K.a
    KB, VB = 65536, 114688
    QA = lambda t, qb, h: 16 + 32 * t + 8 * qb + 4 * h
    Q = lambda t, qb: r("v", 16 + 32 * t + 4 * qb, 4)
    H = lambda t: 32 + 32 * t
    S = lambda kb, qb: H(kb) + 4 * qb
    P = lambda b, qb: H(2 + b) + 4 * qb
    CI = lambda qb: H(4) + 4 * qb
    LS = [f"v{H(5)+i}" for i in range(4)]
    MX = [f"v{H(5)+4+i}" for i in range(4)]
    HA = lambda nb, qb: 208 + (nb * 4 + qb) * 4
    O = lambda b, qb: (((b >> 1) * 4 + qb) * 2 + (b & 1)) * 4
    vWQ, vW1, vRQ, vR1, vKD, vVD, vKR, vVR = (1, 2, 3), 4, (5, 6), 7, (8, 9, 10), (11, 12, 13), (14, 15), (1, 2, 3, 4)
    sW, sM3, sM1, sQ, s1, sX, sK, sV, sIT, sFB, sO, sH, sT = 32, 33, 34, 35, 36, 37, 38, 39, 40, 41, 42, 48, 52
    K.block("start")
    a("s_cmp_ge_u32 s2, 256\ns_cbranch_scc1 k1_end")
    a("s_load_dwordx4 s[56:59], s[0:1], 8\ns_load_dwordx2 s[60:61], s[0:1], 24\ns_load_dwordx4 s[64:67], s[0:1], 48\ns_load_dwordx2 s[62:63], s[0:1], 96")
    a(f"v_lshrrev_b32 v16, 6, v0\nv_and_b32 v17, 63, v0\ns_nop 0\nv_readfirstlane_b32 s{sW}, v16")
    a("s_lshr_b32 s3, s2, 3\ns_and_b32 s4, s2, 6\ns_lshl_b32 s4, s4, 2\ns_and_b32 s5, s3, 7\ns_add_u32 s4, s4, s5")
    a(f"s_and_b32 s5, s2, 1\ns_lshl_b32 s5, s5, 2\ns_lshr_b32 s3, s3, 3\ns_add_u32 s5, s5, s3\ns_lshl_b32 s5, s5, 2\ns_add_u32 s5, s5, s{sW}")
    a(f"s_mul_i32 s{sM3}, s{sW}, 3072\ns_lshl_b32 s{sM1}, s{sW}, 10\ns_add_u32 s{sM1}, s{sM1}, 12288")
    a("s_and_b32 s6, s4, 1\ns_lshr_b32 s7, s4, 1")
    a("v_mul_u32_u24 v18, 192, v16\nv_add_u32 v18, v18, v17\nv_lshlrev_b32 v0, 4, v17")
    grow = lambda d, rho: [f"v_and_b32 {d}, 3, {rho}", f"v_bfe_u32 v24, {rho}, 2, 2", f"v_lshl_add_u32 {d}, v24, 3, {d}",
                           f"v_lshrrev_b32 v24, 4, {rho}", f"v_lshl_add_u32 {d}, v24, 2, {d}"]
    for i in range(3):
        a(f"v_add_u32 v19, {64*i}, v18", divc("v20", "v19", 24, 768))
        a("v_mul_u32_u24 v21, 24, v20\nv_sub_u32 v21, v19, v21\nv_and_b32 v22, 6, v20\nv_xor_b32 v21, v21, v22", grow("v23", "v20"))
        a(f"v_mul_u32_u24 v23, 12288, v23\nv_lshl_add_u32 v23, v21, 4, v23\nv_subrev_u32 v{vWQ[i]}, {1024*i}, v23")
        a(f"v_xor_b32 v22, v18, v22\nv_lshlrev_b32 v{vVD[i]}, 4, v22\nv_bfe_u32 v22, v20, 1, 3\nv_xor_b32 v22, v18, v22\nv_lshlrev_b32 v{vKD[i]}, 4, v22")
    a(divc("v20", "v17", 6, 64), "v_mul_u32_u24 v21, 6, v20\nv_sub_u32 v21, v17, v21\nv_lshl_add_u32 v20, v16, 3, v20", grow("v23", "v20"))
    a("s_lshl_b32 s68, s6, 6\ns_lshl_b32 s69, s6, 5\ns_add_u32 s69, s69, 64\nv_mov_b32 v19, s68\nv_mov_b32 v22, s69")
    a("v_cmp_gt_u32 vcc, 4, v21\nv_cndmask_b32 v19, v22, v19, vcc\nv_lshl_add_u32 v19, v21, 4, v19\nv_mul_u32_u24 v23, 3072, v23\nv_add_u32 v19, v19, v23")
    a(f"v_bfrev_b32 v22, 1\nv_cmp_gt_u32 vcc, 48, v17\nv_cndmask_b32 v{vW1}, v22, v19, vcc")
    a("s_waitcnt lgkmcnt(0)")
    a("s_mul_i32 s70, s4, 384\ns_mul_i32 s71, s7, 192\ns_mul_i32 s72, s5, 81920\ns_mul_i32 s73, s4, 786432\ns_add_u32 s73, s73, 589824")
    a(srd(8, 60, "s70", 0), f"s_sub_u32 s10, {640*12288}, s70", srd(12, 64, "s71", 0), f"s_sub_u32 s14, {640*3072}, s71")
    a(srd(16, 62, "s72", 81920), srd(20, 56, "s73", 196608), srd(24, 58, "s73", 196608), srd(28, 62, AM, AMSZ), srd(76, 66, "s71", 192))
    a(f"s_mov_b32 s{sQ}, 0\ns_mov_b32 s{s1}, 0\ns_mov_b32 s{sX}, 0")
    def xsld(sl): return [I(f"buffer_load_dwordx4 a[{192+16*sl+4*q}:{195+16*sl+4*q}], v0, s[16:19], s{sX} offen offset:{1024*q}", vm=f"x{sl}") for q in range(4)] + [f"s_add_u32 s{sX}, s{sX}, 4096"]
    def dma3(m0, vo, sr, so, tag): return [m0] + [I(f"buffer_load_dwordx4 v{vo[i]}, s[{sr}:{sr+3}], s{so} offen offset:{1024*i} lds", vm=tag) for i in range(3)]
    def wdma(sl): return dma3(f"s_add_u32 m0, s{sM3}, {16384*sl}", vWQ, 8, sQ, "_") + [f"s_add_u32 m0, s{sM1}, {16384*sl}", f"s_add_u32 s{sQ}, s{sQ}, {32*12288}",
                              I(f"buffer_load_dwordx4 v{vW1}, s[12:15], s{s1} offen lds", vm=f"w{sl}"), f"s_add_u32 s{s1}, s{s1}, {32*3072}"]
    def nopm(l): return [l[0], "s_nop 0"] + l[1:]
    a(xsld(0), nopm(wdma(0)))
    a("v_lshrrev_b32 v19, 4, v17\nv_lshlrev_b32 v20, 3, v19\ns_add_u32 s69, s69, 64")
    for i, (so, off) in enumerate((("s68", 0), ("s68", 32), ("s69", 0))):
        a(I(f"buffer_load_dwordx2 v[{HA(i,0)}:{HA(i,0)+1}], v20, s[76:79], {so} offen offset:{off}", vm="b1"))
    for sl in (1, 2): a(xsld(sl), nopm(wdma(sl)))
    a("v_lshrrev_b32 v20, 2, v17\nv_and_b32 v21, 3, v17\nv_and_b32 v22, 6, v20\nv_xor_b32 v22, v21, v22\nv_mul_u32_u24 v23, 384, v20")
    a(f"v_lshl_add_u32 v{vRQ[0]}, v22, 4, v23\nv_xor_b32 v{vRQ[1]}, 64, v{vRQ[0]}")
    a(f"v_and_b32 v20, 7, v20\nv_mul_u32_u24 v20, 96, v20\nv_lshl_add_u32 v20, v21, 3, v20\nv_lshrrev_b32 v22, 5, v17\nv_lshl_add_u32 v20, v22, 10, v20\nv_add_u32 v{vR1}, 12288, v20")
    a(f"v_and_b32 v20, 15, v17\nv_lshrrev_b32 v21, 1, v20\nv_xor_b32 v21, v21, v19\nv_mul_u32_u24 v20, 384, v20\nv_lshl_add_u32 v20, v21, 4, v20")
    a(f"v_add_u32 v{vKR[0]}, {KB}, v20\nv_xor_b32 v{vKR[1]}, 64, v{vKR[0]}")
    a(f"s_lshr_b32 s70, s4, 3\ns_mul_i32 s70, s70, 60\ns_and_b32 s71, s4, 7\ns_mul_i32 s71, s71, 6\ns_add_u32 s70, s70, s71")
    a(f"s_sub_u32 s71, s7, 12\ns_mul_i32 s71, s71, 60\ns_mul_i32 s72, s6, 6\ns_add_u32 s71, s71, s72\ns_add_u32 s71, s71, 48")
    a(f"s_cmp_lt_u32 s4, 24\ns_cselect_b32 s70, s70, s71\ns_mul_i32 s72, s5, 480\ns_add_u32 s70, s70, s72\ns_lshl_b32 s{sO}, s70, 11")
    for i in range(1, 6): a(f"s_add_u32 s{sO+i}, s{sO}, {(i//3)*240*2048+(i%3)*4096}")
    a(f"s_mul_i32 s70, s7, 3\ns_add_u32 s70, s70, s72\ns_add_u32 s70, s70, 180\ns_add_u32 s71, s70, s6\ns_lshl_b32 s{sH}, s71, 11\ns_add_u32 s{sH+1}, s{sH}, {240*2048}")
    a(f"s_add_u32 s71, s70, 2\ns_lshl_b32 s71, s71, 11\ns_lshl_b32 s70, s6, 3\ns_add_u32 s{sH+2}, s71, s70\ns_add_u32 s{sH+3}, s{sH+2}, {240*2048}")
    a(f"s_mov_b32 s{sIT}, 0\ns_mov_b32 s{sK}, 0\ns_mov_b32 s{sFB}, 0")
    for i in range(16, 208): a(f"v_mov_b32 v{i}, 0")
    for i in range(172): a(f"v_accvgpr_write_b32 a{i}, 0")
    a(W(vm="b1"))
    for i in range(3):
        b = HA(i, 0)
        a(f"v_and_b32 v{b+3}, 0xffff0000, v{b+1}\nv_lshlrev_b32 v{b+2}, 16, v{b+1}\nv_and_b32 v{b+1}, 0xffff0000, v{b}\nv_lshlrev_b32 v{b}, 16, v{b}")
        for q in (3, 2, 1, 0):
            for j in range(4): a(f"v_mul_f32 v{b+4*q+j}, {f32(CS)}, v{b+j}")
    WF = lambda n: 172 + 4 * (n % 5)
    def wrd(sl, n):
        o = []
        for p in range(2):
            if n < 12: ad, off = vRQ[(n >> 1) & 1], 16384 * sl + 6144 * p + 128 * (n >> 2) + 8 * (n & 1)
            else: ad, off = vR1, 16384 * sl + 2048 * p + 32 * (n - 12)
            o.append(I(f"ds_read_b64_tr_b16 a[{WF(n)+2*p}:{WF(n)+2*p+1}], v{ad} offset:{off}", lg=f"f{n%5}"))
        return o
    a(W(vm="w0"), "s_barrier")
    for n in range(4): a(wrd(0, n))
    a(W(lg="f0"))
    K.block("p1", 6)
    for sl in range(4):
        mf = []; fl = {i: [] for i in range(60)}
        for n in range(15):
            for q in range(4):
                d = r("v", QA(n >> 1, q, n & 1) if n < 12 else HA(n - 12, q), 4)
                mf.append(mfma(d, r("a", WF(n), 4), r("a", 192 + 16 * sl + 4 * q, 4), d))
            rd = wrd(sl, n + 4) if n < 11 else wrd((sl + 1) % 4, n - 11)
            fl[4 * n].append(rd[0]); fl[4 * n + 1].append(rd[1]); fl[4 * n + 3].append(W(lg=f"f{(n+1)%5}"))
        for i, x in enumerate(xsld((sl + 3) % 4)): fl[2 + 4 * i].append(x)
        fl[42] += [W(vm=f"w{(sl+1)%4}"), "s_barrier"]
        for g, x in zip((43, 46, 47, 50, 51, 51, 54, 55), wdma((sl + 3) % 4)): fl[g].insert(0, x)
        if sl in (1, 2):
            kv = dma3(f"s_add_u32 m0, s{sT}, {KB if sl == 1 else VB}", vKD if sl == 1 else vVD, 20 if sl == 1 else 24, sK, "_")
            for g, x in zip((22, 26, 30, 34), kv): fl[g].append(x)
        if sl == 0: fl[22].append(f"s_add_u32 s{sT}, s{sM3}, s{sK}")
        if sl == 3:
            fl[22].append(f"s_add_u32 s{sK}, s{sK}, 12288"); fl[26].append(f"s_min_u32 s{sK}, s{sK}, 36864")
            fl[30].append(f"s_add_u32 s{sIT}, s{sIT}, 1"); fl[58].append(f"s_cmp_lt_u32 s{sIT}, 5")
            fl[59].append("s_cbranch_scc1 k1_p1")
        K.weave(mf, fl)
    FR = lambda s: 192 + 4 * s
    def krd(sl, f, s): return [I(f"ds_read_b128 a[{FR(s)}:{FR(s)+3}], v{vKR[f&1]} offset:{12288*sl+6144*(f//6)+128*((f%6)>>1)}", lg=f"g{s}")]
    def vrd(sl, b, s): return [I(f"ds_read_b64_tr_b16 a[{FR(s)+2*p}:{FR(s)+2*p+1}], v{vVR[b&3]} offset:{12288*sl+6144*p+128*(b>>2)}", lg=f"g{s}") for p in range(2)]
    def qk(f, s, c0):
        kb, t = f // 6, f % 6
        return [mfma(r("v", S(kb, q), 4), r("a", FR(s), 4), Q(t, q), (c0(q) if t == 0 else r("v", S(kb, q), 4))) for q in range(4)]
    def pv(b, s, pb, qs=range(4)): return [mfma(r("a", O(b, q), 4), r("a", FR(s), 4), r("v", P(pb, q), 4), r("a", O(b, q), 4)) for q in qs]
    cinit = lambda q: r("v", CI(q), 4)
    def sm(kb, q, pb):
        s = S(kb, q); E = lambda i: f"v_exp_f32 v{s+i}, v{s+i}"; A = lambda i: f"v_add_f32 {LS[q]}, {LS[q]}, v{s+i}"
        C = lambda i: f"v_cvt_pk_bf16_f32 v{P(pb,q)+2*kb+i}, v{s+2*i}, v{s+2*i+1}"
        return [E(0), E(1), A(0), E(2), A(1), E(3), C(0), A(2), A(3), C(1)]
    qcvt = lambda t: [f"v_cvt_pk_bf16_f32 v{16+32*t+i}, v{16+32*t+2*i}, v{17+32*t+2*i}" for i in range(16)]
    kdma = lambda sl: dma3(f"s_add_u32 m0, s{sM3}, {KB+12288*sl}", vKD, 20, sK, f"k{sl}") + [f"s_add_u32 s{sK}, s{sK}, 12288"]
    vdma = lambda sl: dma3(f"s_add_u32 m0, s{sM3}, {VB+12288*sl}", vVD, 24, sV, f"v{sl}") + [f"s_add_u32 s{sV}, s{sV}, 12288"]
    LEAD = 5
    def setm():
        o = [f"v_sub_f32 {MX[0]}, 0, {MX[0]}"] + xbcast(MX)
        return o + [f"v_mov_b32 v{CI(q)+j}, {MX[q]}" for q in range(4) for j in range(4)]
    def tile0(first):
        for f in range(8): a(krd(0, f, 8 + f))
        if first: a(qcvt(0))
        mf = []; fl = {i: [] for i in range(24)}
        a(W(lg="g8"))
        for f in range(6):
            mf += qk(f, 8 + f, lambda q: "0")
            if 1 <= f <= 4: fl[4 * f] += krd(0, f + 7, 8 + (f + 7) % 8)
            if first and f < 5:
                for i, x in enumerate(qcvt(f + 1)): fl[4 * f + i // 4].append(x)
            fl[4 * f + 3].append(W(lg=f"g{8+(f+1)%8}"))
        K.weave(mf, fl)
        if first:
            a(f"v_lshrrev_b32 v1, 6, v0\nv_mul_u32_u24 v1, 384, v1\nv_bfe_u32 v2, v0, 7, 2\nv_lshl_add_u32 v1, v2, 5, v1\nv_bfe_u32 v2, v0, 4, 2")
            a(f"v_lshl_add_u32 v1, v2, 3, v1\nv_add_u32 v1, {VB}, v1\nv_xor_b32 v2, 32, v1\nv_xor_b32 v3, 64, v1\nv_xor_b32 v4, 96, v1")
            for i in range(172, 192): a(f"v_accvgpr_write_b32 a{i}, 0")
            for q in range(4): a(f"v_max3_f32 {MX[q]}, v{S(0,q)}, v{S(0,q)+1}, v{S(0,q)+2}\nv_max_f32 {MX[q]}, {MX[q]}, v{S(0,q)+3}")
            a(xred("v_max_f32", MX, None), setm())
        else: a("s_nop 7")
        for q in range(4): a(f"v_mov_b32 {LS[q]}, 0")
        a(f"s_mov_b32 s{sK}, 49152\ns_mov_b32 s{sV}, 36864")
        mf = []; fl = {i: [] for i in range(24)}
        for f in range(6, 12):
            mf += qk(f, 8 + f % 8, cinit)
            if f < 11: fl[4 * (f - 6)] += krd(1, f - 6, f - 6)
        for q in range(4):
            v = [f"v_add_f32 v{S(0,q)+j}, v{S(0,q)+j}, v{CI(q)}" for j in range(4)] + sm(0, q, 0)
            for i, x in enumerate(v): fl[6 * q + (i * 6) // 14].append(x)
        for f in range(6, 11): fl[4 * (f - 6) + 3].append(W(lg=f"g{8+(f+1)%8}"))
        fl[19].append("s_barrier")
        K.weave(mf, fl)
        a(nopm(kdma(0)))
        if first:
            for q in range(4):
                for nb in range(3):
                    h = HA(nb, q)
                    for j in range(4): a(f"v_max_f32 v{h+j}, 0, v{h+j}")
                    for j in (0, 2): a(f"v_pk_mul_f32 v[{h+j}:{h+j+1}], v[{h+j}:{h+j+1}], v[{h+j}:{h+j+1}]")
                    d = HA(0, q) + 2 * nb if nb < 2 else h
                    for j in (0, 1): a(f"v_cvt_pk_bf16_f32 v{d+j}, v{h+2*j}, v{h+2*j+1}")
                a(f"buffer_store_dwordx4 v[{HA(0,q)}:{HA(0,q)+3}], v0, s[28:31], s{sH+(q>>1)} offen offset:{1024*(q&1)}")
                a(f"buffer_store_dwordx2 v[{HA(2,q)}:{HA(2,q)+1}], v0, s[28:31], s{sH+2+(q>>1)} offen offset:{1024*(q&1)}")
        else: a("s_nop 7")
        x, y = sm(1, 0, 0), sm(1, 1, 0)
        for i in range(10): a(x[i], y[i])
        a(W(lg="g0"))
    K.block("t0")
    a(W(vm="x2"))
    tile0(True)
    for u in (1, 2, 3, 0):
        K.block(f"p2{u}", 6 if u == 1 else None)
        mf = []; fl = {i: [] for i in range(96)}
        for f in range(24):
            mf += qk(f, f % 8, cinit) if f < 12 else pv(f - 12, f % 8, (u + 1) % 2)
            n = f + LEAD
            rd = krd(u, n, n % 8) if n < 12 else vrd((u + 3) % 4, n - 12, n % 8) if n < 24 else krd((u + 1) % 4, n - 24, n % 8)
            for i, x in enumerate(rd): fl[4 * f + i].append(x)
        b0 = 4 * (24 - LEAD) - 2
        fl[b0] += [W(vm=[f"v{u}", f"k{(u+1)%4}"]), "s_barrier"]
        for g, x in zip((3, 4, 7, 8, 11, 12, 15, 16, 19, 20), vdma((u + 2) % 4) + kdma(u)): fl[b0 + g].append(x)
        for k in range(8):
            kb, q = (1, k + 2) if k < 2 else (0, k - 2) if k < 6 else (1, k - 6)
            for i, x in enumerate(sm(kb, q, (u + 1) % 2 if k < 2 else u % 2)): fl[12 * k + i].append(x)
        for f in range(24): fl[4 * f + 3].append(W(lg=f"g{(f+1)%8}"))
        if u == 3: fl[94].append(f"s_cmp_eq_u32 s{sV}, {18*12288}"); fl[95].append("s_cbranch_scc1 k1_tail")
        if u == 0: fl[95].append("s_branch k1_p21")
        K.weave(mf, fl)
    K.block("tail")
    x, y = sm(1, 2, 1), sm(1, 3, 1)
    for i in range(10): a((vrd(3, i, (i + 5) % 16) if i < 5 else []), x[i], y[i])
    a(W(lg="g5"))
    T0 = 208
    def oep(t, q, pk):
        d = T0 + 8 * ((4 * t + q) % 6); o = [f"v_accvgpr_read_b32 v{d+j}, a{O(2*t,q)+j}" for j in range(8)]
        if pk: o += [f"v_pk_mul_f32 v[{d+j}:{d+j+1}], v[{d+j}:{d+j+1}], v[{CI(q)}:{CI(q)+1}]" for j in range(0, 8, 2)]
        else: o += [f"v_mul_f32 v{d+j}, v{d+j}, v{CI(q)}" for j in range(8)]
        o += [f"v_cvt_pk_bf16_f32 v{d+j}, v{d+2*j}, v{d+2*j+1}" for j in range(4)]
        return o + [f"buffer_store_dwordx4 v[{d}:{d+3}], v0, s[28:31], s{sO+3*(q>>1)+(t>>1)} offen offset:{2048*(t&1)+1024*(q&1)}"]
    mf = []; fl = {i: [] for i in range(48)}
    for b in range(12):
        mf += pv(b, (b + 5) % 16, 1)
        if b + 5 < 12:
            for i, z in enumerate(vrd(3, b + 5, (b + 10) % 16)): fl[4 * b + i].append(z)
    lr = xred("v_add_f32", LS, None) + [f"v_cmp_nlt_f32 vcc, {LS[0]}, v5", f"v_rcp_f32 {LS[0]}, {LS[0]}", "s_cmp_lg_u64 vcc, 0", "s_cselect_b32 s70, 1, 0",
          "v_mov_b32 v6, s70", I("ds_write_b32 v7, v6", lg="fl")] + xbcast(LS) + [f"v_mov_b32 v{CI(q)+j}, {LS[q]}" for q in range(4) for j in range(2)]
    lr = [f"v_mov_b32 v5, {f32(2.0**40)}", f"s_lshl_b32 s70, s{sW}, 2", "v_mov_b32 v7, s70"] + lr
    for i, z in enumerate(lr): fl[i // 3].append(z)
    NOV = 5
    ov = [z for k in range(NOV) for z in oep(k // 4, k % 4, False)]
    g0 = (len(lr) + 2) // 3
    assert g0 >= 12
    for i, z in enumerate(ov): fl[g0 + (i * (48 - g0)) // len(ov)].append(z)
    for b in range(11): fl[4 * b + 3].append(W(lg=f"g{(b+6)%16}"))
    K.weave(mf, fl)
    for k in range(NOV, 24):
        a(oep(k // 4, k % 4, True))
        if k == 20: a(W(lg="fl"), "s_barrier", "v_mov_b32 v7, 0", I(f"ds_read_b128 v[{S(0,0)}:{S(0,0)+3}], v7", lg="fr"))
    s = S(0, 0)
    a(W(lg="fr"), f"v_or3_b32 v{s}, v{s}, v{s+1}, v{s+2}\nv_or_b32 v{s}, v{s}, v{s+3}\ns_nop 0\nv_readfirstlane_b32 s70, v{s}")
    a(f"s_andn2_b32 s70, s70, s{sFB}\ns_cbranch_scc1 k1_fb")
    K.block("end"); a("s_endpgm")
    K.block("fb")
    a(W(full=True), f"s_barrier\ns_mov_b32 s{sFB}, 1\ns_mov_b32 s{sK}, 0")
    for q in range(4): a(f"v_mov_b32 {MX[q]}, 0xff800000")
    K.block("fbl")
    a(nopm(kdma(0)), W(full=True), "s_barrier")
    for f in range(12): a(krd(0, f, f))
    a(W(full=True), "s_barrier")
    for f in range(12): a(qk(f, f, lambda q: "0"))
    a("s_nop 7\ns_nop 7")
    for kb in range(2):
        for q in range(4):
            for j in (0, 2): a(f"v_max3_f32 {MX[q]}, {MX[q]}, v{S(kb,q)+j}, v{S(kb,q)+j+1}")
    a(f"s_cmp_lt_u32 s{sK}, 196608\ns_cbranch_scc1 k1_fbl")
    K.block("fb2")
    a(xred("v_max_f32", MX, None), setm(), f"s_mov_b32 s{sK}, 0\ns_mov_b32 s{sV}, 0")
    for sl in range(4): a(nopm(kdma(sl)), nopm(vdma(sl)))
    for i in range(192): a(f"v_accvgpr_write_b32 a{i}, 0")
    a(W(full=True), "s_barrier")
    tile0(False)
    a("s_branch k1_p21")
    main = ["p21", "p22", "p23", "p20"] * 3 + ["p21", "p22", "p23", "tail"]
    K.blocks["_kv"] = [I("", vm=t) for t in ("k0", "k1", "k2", "k3", "v0", "v1", "v2", "v3")] + [W(full=True)]
    K.traces = [["_kv", "start"] + ["p1"] * 5 + ["t0"] + main + ["fb"] + ["fbl"] * 2 + ["fb2"] + main]
    return K

def k2():
    K = Kernel("k2_kernel", 304, 168); a = K.a
    AC = lambda rb, n: 16 + (rb * 10 + n) * 4
    BF = lambda st, rb: (st % 12) * 8 + rb * 4
    AF = lambda f: 96 + 4 * (f % 10)
    vD, vR, vB, vO, XR, BR, TM = (1, 2, 3, 4, 5), (6, 7, 8, 9), (10, 11), 12, 96, 106, 116
    sW, sKS, sM, sD, sB, sIT, sE, sC = 32, 33, 34, 35, 36, 37, 40, 48
    K.block("start")
    a("s_cmp_ge_u32 s2, 256\ns_cbranch_scc1 k2_end")
    a("s_load_dwordx2 s[56:57], s[0:1], 0\ns_load_dwordx2 s[58:59], s[0:1], 32\ns_load_dwordx4 s[60:63], s[0:1], 64\ns_load_dwordx2 s[64:65], s[0:1], 80\ns_load_dwordx2 s[66:67], s[0:1], 96")
    a(f"v_lshrrev_b32 v16, 6, v0\nv_and_b32 v17, 63, v0\ns_nop 0\nv_readfirstlane_b32 s{sW}, v16")
    a(f"s_bfe_u32 s{sKS}, s2, 0x20001\ns_and_b32 s3, s2, 1\ns_lshl_b32 s3, s3, 3\ns_lshr_b32 s4, s2, 5\ns_add_u32 s3, s3, s4\ns_bfe_u32 s4, s2, 0x20003")
    a(f"s_and_b32 s5, s{sKS}, 1\ns_lshr_b32 s6, s{sKS}, 1\ns_mul_i32 s7, s5, 10\ns_mul_i32 s{sM}, s{sW}, 5120")
    a("v_mul_u32_u24 v18, 320, v16\nv_add_u32 v18, v18, v17\nv_lshlrev_b32 v0, 4, v17")
    for i in range(5):
        a(f"v_add_u32 v19, {64*i}, v18", divc("v20", "v19", 20, 1280), "v_mul_u32_u24 v21, 20, v20\nv_sub_u32 v21, v19, v21")
        a("v_lshrrev_b32 v22, 1, v20\nv_and_b32 v22, 2, v22\nv_xor_b32 v21, v21, v22\nv_add_u32 v21, s7, v21\nv_subrev_u32 v22, 20, v21\nv_min_u32 v21, v21, v22")
        a(f"v_mul_u32_u24 v20, 1280, v20\nv_lshl_add_u32 v20, v21, 4, v20\nv_subrev_u32 v{vD[i]}, {1024*(i%4)}, v20")
    a(f"s_lshl_b32 s68, s6, 10\nv_add_u32 v{vB[0]}, s68, v0\nv_xor_b32 v{vB[1]}, 1024, v{vB[0]}")
    a(f"s_mul_i32 s68, s4, 320\ns_mul_i32 s69, s{sKS}, {1536*1280}\ns_add_u32 s69, s69, s68\ns_mul_i32 s70, s{sKS}, {384*1280}\ns_add_u32 s70, s70, {24*192*1280}\ns_add_u32 s70, s70, s68")
    a(f"s_lshl_b32 s71, s3, 2\ns_add_u32 s71, s71, s{sW}\ns_mul_i32 s72, s71, 240\ns_mul_i32 s73, s{sKS}, 60\ns_add_u32 s72, s72, s73\ns_lshl_b32 s72, s72, 11\ns_add_u32 s72, s72, {AM}")
    a("s_waitcnt lgkmcnt(0)")
    a(f"s_cmp_eq_u32 s{sKS}, 3\ns_cselect_b32 s74, s60, s58\ns_cselect_b32 s75, s61, s59\ns_cselect_b32 s69, s68, s69")
    a(srd(8, 74, "s69", 0), f"s_sub_u32 s10, {1536*1280}, s68", srd(12, 58, "s70", 0), f"s_sub_u32 s14, {384*1280}, s68", srd(16, 66, "s72", 60 * 2048))
    a(f"s_mov_b32 s{sD}, 0\ns_mov_b32 s{sB}, 0\ns_mov_b32 s{sIT}, 0")
    def bld(sl): return [I(f"buffer_load_dwordx4 a[{BF(2*sl+sg,rb)}:{BF(2*sl+sg,rb)+3}], v{vB[rb]}, s[16:19], s{sB} offen offset:{2048*sg}", vm="_") for sg in range(2) for rb in range(2)] + [f"s_add_u32 s{sB}, s{sB}, 4096"]
    def wdma(sl):
        d = [I(f"buffer_load_dwordx4 v{vD[i]}, s[8:11], s{sD} offen offset:{1024*(i%4)} lds", vm=f"w{sl}") for i in range(5)]
        return [f"s_add_u32 m0, s{sM}, {20480*sl}"] + d[:4] + [f"s_add_u32 m0, s{sM}, {20480*sl+4096}", d[4], f"s_add_u32 s{sD}, s{sD}, {64*1280}"]
    for sl in range(5):
        d = wdma(sl); a(d[0], bld(sl), d[1:6], "s_nop 0", d[6:])
    a(srd(20, 56, 0, 2048 * 1280), srd(24, 64, 0, 2048 * 1280), srd(28, 62, 0, 1280), srd(76, 66, EX, EXSZ), srd(80, 66, CNT, 32768))
    a("v_lshrrev_b32 v19, 2, v17\nv_mul_u32_u24 v19, 320, v19\nv_and_b32 v20, 3, v17\nv_lshl_add_u32 v19, v20, 3, v19\nv_bfe_u32 v20, v17, 4, 1")
    a(f"v_lshl_add_u32 v{vR[0]}, v20, 5, v19\nv_xor_b32 v20, 1, v20\nv_lshl_add_u32 v{vR[1]}, v20, 5, v19\nv_add_u32 v{vR[2]}, 61440, v{vR[0]}\nv_add_u32 v{vR[3]}, 61440, v{vR[1]}")
    a("s_mul_i32 s69, s5, 160\ns_add_u32 s69, s69, s68\nv_lshrrev_b32 v19, 4, v17\nv_lshlrev_b32 v19, 3, v19\nv_add_u32 v13, s69, v19")
    a(f"s_lshl_b32 s69, s71, 1\ns_add_u32 s69, s69, s6\ns_mul_i32 s69, s69, {16*1280}\nv_and_b32 v20, 15, v17\nv_mul_u32_u24 v20, 1280, v20\nv_add3_u32 v{vO}, v20, v13, s69")
    a(f"s_lshl_b32 s69, s3, 2\ns_add_u32 s69, s69, s4\ns_lshl_b32 s69, s69, 2\ns_add_u32 s69, s69, s{sW}\ns_lshl_b32 s{sC}, s69, 7\ns_mul_i32 s69, s69, {16*3072}")
    for d in range(4): a(f"s_xor_b32 s70, s{sKS}, {d}\ns_mul_i32 s70, s70, {4*3072}\ns_add_u32 s{sE+d}, s69, s70\ns_add_u32 s{sE+4+d}, s{sE+d}, {3072*d}")
    for i in range(16, 96): a(f"v_mov_b32 v{i}, 0")
    def ard(sl, f):
        sg, n = f // 10, f % 10
        return [I(f"ds_read_b64_tr_b16 a[{AF(f)+2*p}:{AF(f)+2*p+1}], v{vR[(n&1)+2*(sl//3)]} offset:{20480*(sl%3)+10240*sg+5120*p+64*(n>>1)}", lg=f"f{f%10}") for p in range(2)]
    a(W(vm="w0"), "s_barrier")
    for f in range(7): a(ard(0, f))
    a(W(lg="f1"))
    K.block("loop", 6)
    for sl in range(6):
        mf = []; fl = {i: [] for i in range(40)}
        for f in range(20):
            for rb in range(2):
                d = r("v", AC(rb, f % 10), 4)
                mf.append(mfma(d, r("a", AF(f), 4), r("a", BF(2 * sl + f // 10, rb), 4), d))
            rd = ard(sl, f + 7) if f < 13 else ard((sl + 1) % 6, f - 13)
            fl[2 * f].append(rd[0]); fl[2 * f + 1].append(rd[1])
            if f & 1: fl[2 * f + 1].append(W(lg=f"f{(f+2)%10}"))
        for g, x in zip((1, 5, 9, 13, 14), bld((sl + 5) % 6)): fl[g].append(x)
        fl[25] += [W(vm=f"w{(sl+1)%6}"), "s_barrier"]
        for g, x in zip((26, 28, 29, 30, 32, 33, 34, 36), wdma((sl + 5) % 6)): fl[g].append(x)
        if sl == 1:
            sw = [f"s_cmp_eq_u32 s{sIT}, 3"] + [f"s_cselect_b32 s{8+i}, s{12+i}, s{8+i}" for i in range(3)] + [f"s_cselect_b32 s{sD}, 0, s{sD}", f"s_add_u32 s{sIT}, s{sIT}, 1"]
            for g, x in zip((16, 17, 18, 20, 21, 22), sw): fl[g].append(x)
        if sl == 5: fl[37].append(f"s_cmp_lt_u32 s{sIT}, 4"); fl[39].append("s_cbranch_scc1 k2_loop")
        K.weave(mf, fl)
    K.block("mid")
    a(f"s_cmp_eq_u32 s{sIT}, 5\ns_cbranch_scc1 k2_fin")
    for n in range(5):
        a(I(f"buffer_load_dwordx2 v[{XR+2*n}:{XR+2*n+1}], v{vO}, s[20:23], 0 offen offset:{32*n}", vm="x"))
        a(I(f"buffer_load_dwordx2 v[{BR+2*n}:{BR+2*n+1}], v13, s[28:31], 0 offen offset:{32*n}", vm="x"))
    a(f"s_cmp_lg_u32 s{sKS}, 3\ns_cbranch_scc1 k2_loop")
    def send(d, so):
        t = TM + 12 * d; s = AC(d >> 1, 5 * (d & 1))
        for j in range(10):
            a(f"v_cvt_pk_bf16_f32 v{t+j}, v{s+2*j}, v{s+2*j+1}")
            if j in (3, 7, 9): a(f"buffer_store_dwordx4 v[{t+(j&12)}:{t+(j&12)+3}], v0, s[76:79], s{so} offen offset:{256*(j&12)} sc1")
    K.block("fdump")
    for d in (0, 2, 1, 3): send(d, sE + d)
    for i in range(16, 96): a(f"v_mov_b32 v{i}, 0")
    a("s_nop 0\ns_branch k2_loop")
    K.block("fin")
    for d in (2, 1, 3): send(d, sE + 4 + d)
    XF, BFv = AC(0, 5), AC(1, 0)
    a(W(vm="x"))
    for src, dst in ((XR, XF), (BR, BFv)):
        for j in range(10): a(f"v_lshlrev_b32 v{dst+2*j}, 16, v{src+j}\nv_and_b32 v{dst+2*j+1}, 0xffff0000, v{src+j}")
    a(f"v_mov_b32 v14, 1\nv_mov_b32 v15, 0\ns_mov_b64 exec, 1\ns_mov_b32 s71, 0", W(full=True), f"buffer_atomic_add v14, v15, s[80:83], s{sC} offen sc1")
    K.block("poll")
    a(f"buffer_load_dword v14, v15, s[80:83], s{sC} offen sc1", W(full=True), "v_readfirstlane_b32 s70, v14\ns_add_u32 s71, s71, 1\ns_lshr_b32 s72, s71, 18\ns_and_b32 s72, s72, 4\ns_or_b32 s70, s70, s72\ns_cmp_lt_u32 s70, 4\ns_cbranch_scc1 k2_poll")
    K.block("out")
    a("s_mov_b64 exec, -1\ns_barrier")
    for d in range(4):
        for j in range(3): a(I(f"buffer_load_dwordx4 v[{TM+12*d+4*j}:{TM+12*d+4*j+3}], v0, s[76:79], s{sE} offen offset:{1024*j} sc1", vm=f"e{d}"))
        a(f"s_add_u32 s{sE}, s{sE}, 3072")
    G = AC(1, 5)
    a(f"s_mov_b32 s70, {f32(1/CS**2)}\ns_mov_b32 s71, {f32(-math.log2(math.e))}", W(vm="e0"))
    for j in range(10): a(f"v_lshlrev_b32 v{G+2*j}, 16, v{TM+j}\nv_and_b32 v{G+2*j+1}, 0xffff0000, v{TM+j}")
    for j in range(20): a(f"v_fma_f32 v{BFv+j}, v{G+j}, s70, v{BFv+j}")
    for j in range(20): a(f"v_mul_f32 v{G+j}, s71, v{BFv+j}")
    for j in range(20): a(f"v_exp_f32 v{G+j}, v{G+j}")
    for j in range(20): a(f"v_add_f32 v{G+j}, 1.0, v{G+j}")
    for j in range(20): a(f"v_rcp_f32 v{G+j}, v{G+j}")
    for j in range(20): a(f"v_mul_f32 v{G+j}, v{G+j}, v{BFv+j}")
    for d in (1, 2, 3):
        a(W(vm=f"e{d}"))
        for j in range(10):
            a(f"v_lshlrev_b32 v14, 16, v{TM+12*d+j}\nv_and_b32 v15, 0xffff0000, v{TM+12*d+j}\nv_pk_add_f32 v[{16+2*j}:{17+2*j}], v[{16+2*j}:{17+2*j}], v[14:15]")
    for n in range(5):
        for j in (4 * n, 4 * n + 2):
            a(f"v_pk_fma_f32 v[{16+j}:{17+j}], v[{16+j}:{17+j}], v[{G+j}:{G+j+1}], v[{XF+j}:{XF+j+1}]\nv_cvt_pk_bf16_f32 v{TM+j//2}, v{16+j}, v{17+j}")
        a(f"buffer_store_dwordx2 v[{TM+2*n}:{TM+2*n+1}], v{vO}, s[24:27], 0 offen offset:{32*n}")
    K.block("end"); a("s_endpgm")
    K.traces = [["start"] + ["loop"] * 4 + ["mid"] + ["loop", "fin", "poll", "out"], ["start"] + ["loop"] * 4 + ["mid", "fdump", "loop", "fin", "poll", "out"]]
    return K

def build(path):
    ref = open(f"cdna_kernels/{NAME}.s.ref").read().split("\n")
    hdr = [l for l in ref if l.startswith(";") and "@launch" not in l]
    ks = [(k0(), 128, 2048), (k1(), 256, 163840), (k2(), 256, 122880)]
    L = hdr + [f"; @launch kernel={k.name} grid=({g},1,1) block=(256,1,1) lds={l}" for k, g, l in ks]
    L += ['.amdgcn_target "amdgcn-amd-amdhsa--gfx950"', ".text"] + [k.text() for k, _, _ in ks]
    L += ['.section .rodata,"a"'] + [k.desc() for k, _, _ in ks]
    open(path, "w").write("\n".join(L) + "\n")
if __name__ == "__main__":
    for kv in sys.argv[2:]:
        k, v = kv.split("="); OPT[k] = int(v)
    build(sys.argv[1] if len(sys.argv) > 1 else f"cdna_kernels/{NAME}.s")
```

```python
import sys, math
sys.path.insert(0, "dev")
from asmlib import *
NAME = "recurrent_scan__sliding_block_cached__dense_activation_squared_relu__prompt"
CS = math.log2(math.e) / math.sqrt(192.0)
XS, CNT, AM, EX = 0, 0x300000, 0x400000, 0x2400000
AMSZ = 64 * 240 * 2048
EXSZ = 64 * 4 * 4 * 4 * 3072
OPT = dict(mimic=1)
TS = 0x4000000
def ts(i): return [f"s_mem{'' if OPT['ts'] == 2 else 'real'}time s[{84+2*i}:{85+2*i}]"] if OPT.get("ts") else []
def tsend(k, n, wsp):
    if not OPT.get("ts"): return []
    o = ts(n - 1) + ["s_waitcnt vmcnt(0)"] + ts(n) + ["s_waitcnt lgkmcnt(0)", "s_mov_b64 exec, 1"] + srd(4, wsp, TS + k * 65536, 65536) + ["s_lshl_b32 s3, s2, 2", "s_add_u32 s3, s3, s32", "s_lshl_b32 s3, s3, 6", "v_mov_b32 v1, 0"]
    for i in range(n + 1): o += [f"v_mov_b32 v2, s{84+2*i}", f"buffer_store_dword v2, v1, s[4:7], s3 offen offset:{4*i}"]
    return o
def divc(dst, src, d, mx):
    m = (65536 + d - 1) // d
    assert all((x * m) >> 16 == x // d for x in range(mx))
    return [f"v_mul_u32_u24 {dst}, {m}, {src}", f"v_lshrrev_b32 {dst}, 16, {dst}"]
def xred(op, x, t):
    return ["s_nop 1", f"v_permlane32_swap_b32 {x[0]}, {x[1]}", f"v_permlane32_swap_b32 {x[2]}, {x[3]}", "s_nop 1",
            f"{op} {x[0]}, {x[0]}, {x[1]}", f"{op} {x[2]}, {x[2]}, {x[3]}", "s_nop 1",
            f"v_permlane16_swap_b32 {x[0]}, {x[2]}", "s_nop 1", f"{op} {x[0]}, {x[0]}, {x[2]}"]
def xbcast(x):
    return [f"v_mov_b32 {x[2]}, {x[0]}", "s_nop 1", f"v_permlane16_swap_b32 {x[0]}, {x[2]}", "s_nop 1",
            f"v_mov_b32 {x[1]}, {x[0]}", f"v_mov_b32 {x[3]}, {x[2]}", "s_nop 1",
            f"v_permlane32_swap_b32 {x[0]}, {x[1]}", f"v_permlane32_swap_b32 {x[2]}, {x[3]}", "s_nop 1"]

def k0():
    K = Kernel("k0_kernel", 72, 72); a = K.a
    K.block("start")
    a("s_cmp_ge_u32 s2, 128\ns_cbranch_scc1 k0_pf", ts(0))
    a("s_load_dwordx2 s[4:5], s[0:1], 0\ns_load_dwordx2 s[6:7], s[0:1], 96")
    a("v_and_b32 v1, 15, v0\nv_lshrrev_b32 v2, 4, v0\nv_lshrrev_b32 v3, 6, v0\nv_and_b32 v4, 3, v2")
    a("v_mul_u32_u24 v5, 1280, v1\nv_mul_u32_u24 v6, 320, v3\nv_lshlrev_b32 v4, 4, v4\nv_add3_u32 v5, v5, v6, v4")
    a("s_mul_i32 s3, s2, 20480\ns_waitcnt lgkmcnt(0)")
    a(srd(8, 4, 0, 2048 * 1280), srd(12, 6, 0, AM))
    for i in range(5): a(I(f"buffer_load_dwordx4 v[{52+4*i}:{55+4*i}], v5, s[8:11], s3 offen offset:{64*i}", vm=f"x{i}"))
    a("v_lshlrev_b32 v6, 6, v1\nv_lshl_add_u32 v7, v2, 2, v6")
    a("v_and_b32 v8, 63, v0\nv_lshlrev_b32 v8, 4, v8\nv_mul_u32_u24 v3, 20480, v3\nv_add_u32 v8, v8, v3")
    a("s_lshr_b32 s16, s2, 2\ns_mul_i32 s16, s16, 81920\ns_and_b32 s17, s2, 3\ns_lshl_b32 s17, s17, 10\ns_add_u32 s16, s16, s17")
    for i in range(5):
        a(W(vm=f"x{i}"))
        for j in range(4):
            a(f"v_lshlrev_b32 v{12+8*i+2*j}, 16, v{52+4*i+j}\nv_and_b32 v{13+8*i+2*j}, 0xffff0000, v{52+4*i+j}")
    def allsum(off):
        a(f"v_add_f32 v9, v9, v10\nds_write_b32 v7, v9 offset:{off}\ns_waitcnt lgkmcnt(0)\ns_barrier")
        for j in range(4): a(f"ds_read_b128 v[{52+4*j}:{55+4*j}], v6 offset:{off+16*j}")
        a("s_waitcnt lgkmcnt(0)")
        for n in (8, 4, 2, 1):
            for j in range(n): a(f"v_add_f32 v{52+j}, v{52+j}, v{52+j+n}")
        a(f"v_mul_f32 v52, {f32(1/640)}, v52")
    a("v_add_f32 v9, v12, v14\nv_add_f32 v10, v13, v15")
    for j in range(4, 40): a(f"v_add_f32 v{9+j%2}, v{9+j%2}, v{12+j}")
    allsum(0)
    a("v_mov_b32 v11, v52\nv_mov_b32 v9, 0\nv_mov_b32 v10, 0")
    for j in range(40):
        a(f"v_sub_f32 v{60+j%4}, v{12+j}, v11\nv_fmac_f32 v{9+j%2}, v{60+j%4}, v{60+j%4}")
    allsum(1024)
    rb = lambda x: f"v_cvt_pk_bf16_f32 {x}, {x}, {x}\nv_and_b32 {x}, 0xffff0000, {x}"
    a(rb("v11"), rb("v52"), f"v_add_f32 v52, {f32(1e-5)}, v52", rb("v52"), "v_sqrt_f32 v52, v52\ns_nop 0", rb("v52"))
    a(f"v_rcp_f32 v52, v52\ns_nop 0\nv_mul_f32 v52, {f32(CS)}, v52")
    for i in range(5):
        for j in range(4):
            x = 12 + 8 * i + 2 * j
            a(f"v_sub_f32 v{x}, v{x}, v11\nv_sub_f32 v{x+1}, v{x+1}, v11")
            if OPT["mimic"]: a(f"v_cvt_pk_bf16_f32 v{x+1}, v{x}, v{x+1}\nv_lshlrev_b32 v{x}, 16, v{x+1}\nv_and_b32 v{x+1}, 0xffff0000, v{x+1}")
            a(f"v_mul_f32 v{x}, v{x}, v52\nv_mul_f32 v{x+1}, v{x+1}, v52\nv_cvt_pk_bf16_f32 v{12+8*i+j}, v{x}, v{x+1}")
        a(f"buffer_store_dwordx4 v[{12+8*i}:{15+8*i}], v8, s[12:15], s16 offen\ns_add_u32 s16, s16, 4096")
    a(f"s_lshl_b32 s17, s2, 8\ns_add_u32 s17, s17, {CNT}\nv_lshlrev_b32 v9, 2, v0\nv_mov_b32 v10, 0\nv_cmp_gt_u32 vcc, 64, v0")
    a("s_and_saveexec_b64 s[18:19], vcc\nbuffer_store_dword v10, v9, s[12:15], s17 offen\ns_mov_b64 exec, s[18:19]")
    if OPT.get("ts"): a("v_lshrrev_b32 v1, 6, v0\ns_nop 1\nv_readfirstlane_b32 s32, v1\ns_mov_b64 s[20:21], s[6:7]", tsend(0, 2, 20))
    K.block("end"); a("s_endpgm")
    K.block("pf")
    if OPT.get("pf0"):
        a("s_cmp_ge_u32 s2, 256\ns_cbranch_scc1 k0_end\ns_load_dwordx2 s[4:5], s[0:1], 24\ns_load_dwordx2 s[6:7], s[0:1], 48")
        a("s_bfe_u32 s3, s2, 0x20001\ns_bfe_u32 s16, s2, 0x40003\ns_mul_i32 s17, s3, 3072\ns_mul_i32 s18, s3, 768\ns_lshl_b32 s16, s16, 2")
        a("v_lshrrev_b32 v1, 6, v0\nv_add_u32 v1, s16, v1\nv_and_b32 v2, 63, v0\nv_min_u32 v3, 47, v2\nv_lshlrev_b32 v3, 6, v3\nv_mul_u32_u24 v4, 12288, v1\nv_add_u32 v3, v3, v4")
        a(divc("v5", "v2", 12, 64), "v_mul_u32_u24 v6, 12, v5\nv_sub_u32 v6, v2, v6\nv_lshl_add_u32 v5, v5, 6, v1\nv_mul_u32_u24 v5, 3072, v5\nv_lshl_add_u32 v5, v6, 6, v5")
        a("s_waitcnt lgkmcnt(0)", srd(8, 4, 0, 640 * 12288), srd(12, 6, 0, 640 * 3072))
        for i in range(10):
            a(f"buffer_load_dword v{10+i}, v3, s[8:11], s17 offen\ns_add_u32 s17, s17, {64*12288}")
            if i % 5 == 0: a(f"buffer_load_dword v{20+i}, v5, s[12:15], s18 offen\ns_add_u32 s18, s18, {320*3072}")
        if OPT["pf0"] == 2: a("s_waitcnt vmcnt(0)")
    a("s_endpgm")
    K.traces = [["start", "end"]]
    return K

def k1():
    K = Kernel("k1_kernel", 512, 256); a = K.a
    KB, VB = 65536, 114688
    QA = lambda t, qb, h: 16 + 32 * t + 8 * qb + 4 * h
    Q = lambda t, qb: r("v", 16 + 32 * t + 4 * qb, 4)
    H = lambda t: 32 + 32 * t
    S = lambda kb, qb: H(kb) + 4 * qb
    P = lambda b, qb: H(2 + b) + 4 * qb
    CI = lambda qb: H(4) + 4 * qb
    LS = [f"v{H(5)+i}" for i in range(4)]
    MX = [f"v{H(5)+4+i}" for i in range(4)]
    HA = lambda nb, qb: 208 + (nb * 4 + qb) * 4
    O = lambda b, qb: (((b >> 1) * 4 + qb) * 2 + (b & 1)) * 4
    vWQ, vW1, vRQ, vR1, vKD, vVD, vKR, vVR = (1, 2, 3), 4, (5, 6), 7, (8, 9, 10), (11, 12, 13), (14, 15), (1, 2, 3, 4)
    sW, sM3, sM1, sQ, s1, sX, sK, sV, sIT, sFB, sO, sH, sT = 32, 33, 34, 35, 36, 37, 38, 39, 40, 41, 42, 48, 52
    K.block("start")
    a("s_cmp_ge_u32 s2, 256\ns_cbranch_scc1 k1_end", ts(0))
    a("s_load_dwordx4 s[56:59], s[0:1], 8\ns_load_dwordx2 s[60:61], s[0:1], 24\ns_load_dwordx4 s[64:67], s[0:1], 48\ns_load_dwordx2 s[62:63], s[0:1], 96")
    a(f"v_lshrrev_b32 v16, 6, v0\nv_and_b32 v17, 63, v0\ns_nop 0\nv_readfirstlane_b32 s{sW}, v16")
    a("s_lshr_b32 s3, s2, 3\ns_and_b32 s4, s2, 6\ns_lshl_b32 s4, s4, 2\ns_and_b32 s5, s3, 7\ns_add_u32 s4, s4, s5")
    a(f"s_and_b32 s5, s2, 1\ns_lshl_b32 s5, s5, 2\ns_lshr_b32 s3, s3, 3\ns_add_u32 s5, s5, s3\ns_lshl_b32 s5, s5, 2\ns_add_u32 s5, s5, s{sW}")
    a(f"s_mul_i32 s{sM3}, s{sW}, 3072\ns_lshl_b32 s{sM1}, s{sW}, 10\ns_add_u32 s{sM1}, s{sM1}, 12288")
    a("s_and_b32 s6, s4, 1\ns_lshr_b32 s7, s4, 1")
    a("v_mul_u32_u24 v18, 192, v16\nv_add_u32 v18, v18, v17\nv_lshlrev_b32 v0, 4, v17")
    grow = lambda d, rho: [f"v_and_b32 {d}, 3, {rho}", f"v_bfe_u32 v24, {rho}, 2, 2", f"v_lshl_add_u32 {d}, v24, 3, {d}",
                           f"v_lshrrev_b32 v24, 4, {rho}", f"v_lshl_add_u32 {d}, v24, 2, {d}"]
    for i in range(3):
        a(f"v_add_u32 v19, {64*i}, v18", divc("v20", "v19", 24, 768))
        a("v_mul_u32_u24 v21, 24, v20\nv_sub_u32 v21, v19, v21\nv_and_b32 v22, 6, v20\nv_xor_b32 v21, v21, v22", grow("v23", "v20"))
        a(f"v_mul_u32_u24 v23, 12288, v23\nv_lshl_add_u32 v23, v21, 4, v23\nv_subrev_u32 v{vWQ[i]}, {1024*i}, v23")
        a(f"v_xor_b32 v22, v18, v22\nv_lshlrev_b32 v{vVD[i]}, 4, v22\nv_bfe_u32 v22, v20, 1, 3\nv_xor_b32 v22, v18, v22\nv_lshlrev_b32 v{vKD[i]}, 4, v22")
    a(divc("v20", "v17", 6, 64), "v_mul_u32_u24 v21, 6, v20\nv_sub_u32 v21, v17, v21\nv_lshl_add_u32 v20, v16, 3, v20", grow("v23", "v20"))
    a("s_lshl_b32 s68, s6, 6\ns_lshl_b32 s69, s6, 5\ns_add_u32 s69, s69, 64\nv_mov_b32 v19, s68\nv_mov_b32 v22, s69")
    a("v_cmp_gt_u32 vcc, 4, v21\nv_cndmask_b32 v19, v22, v19, vcc\nv_lshl_add_u32 v19, v21, 4, v19\nv_mul_u32_u24 v23, 3072, v23\nv_add_u32 v19, v19, v23")
    a(f"v_bfrev_b32 v22, 1\nv_cmp_gt_u32 vcc, 48, v17\nv_cndmask_b32 v{vW1}, v22, v19, vcc")
    a("s_waitcnt lgkmcnt(0)")
    a("s_mul_i32 s70, s4, 384\ns_mul_i32 s71, s7, 192\ns_mul_i32 s72, s5, 81920\ns_mul_i32 s73, s4, 786432\ns_add_u32 s73, s73, 589824")
    a(srd(8, 60, "s70", 0), f"s_sub_u32 s10, {640*12288}, s70", srd(12, 64, "s71", 0), f"s_sub_u32 s14, {640*3072}, s71")
    a(srd(16, 62, "s72", 81920), srd(20, 56, "s73", 196608), srd(24, 58, "s73", 196608), srd(28, 62, AM, AMSZ), srd(76, 66, "s71", 192))
    a(f"s_mov_b32 s{sQ}, 0\ns_mov_b32 s{s1}, 0\ns_mov_b32 s{sX}, 0")
    def xsld(sl): return [I(f"buffer_load_dwordx4 a[{192+16*sl+4*q}:{195+16*sl+4*q}], v0, s[16:19], s{sX} offen offset:{1024*q}", vm=f"x{sl}") for q in range(4)] + [f"s_add_u32 s{sX}, s{sX}, 4096"]
    def dma3(m0, vo, sr, so, tag): return [m0] + [I(f"buffer_load_dwordx4 v{vo[i]}, s[{sr}:{sr+3}], s{so} offen offset:{1024*i} lds", vm=tag) for i in range(3)]
    def wdma(sl): return dma3(f"s_add_u32 m0, s{sM3}, {16384*sl}", vWQ, 8, sQ, "_") + [f"s_add_u32 m0, s{sM1}, {16384*sl}", f"s_add_u32 s{sQ}, s{sQ}, {32*12288}",
                              I(f"buffer_load_dwordx4 v{vW1}, s[12:15], s{s1} offen lds", vm=f"w{sl}"), f"s_add_u32 s{s1}, s{s1}, {32*3072}"]
    def nopm(l): return [l[0], "s_nop 0"] + l[1:]
    a(xsld(0), nopm(wdma(0)))
    a("v_lshrrev_b32 v19, 4, v17\nv_lshlrev_b32 v20, 3, v19\ns_add_u32 s69, s69, 64")
    for i, (so, off) in enumerate((("s68", 0), ("s68", 32), ("s69", 0))):
        a(I(f"buffer_load_dwordx2 v[{HA(i,0)}:{HA(i,0)+1}], v20, s[76:79], {so} offen offset:{off}", vm="b1"))
    for sl in (1, 2): a(xsld(sl), nopm(wdma(sl)))
    a("v_lshrrev_b32 v20, 2, v17\nv_and_b32 v21, 3, v17\nv_and_b32 v22, 6, v20\nv_xor_b32 v22, v21, v22\nv_mul_u32_u24 v23, 384, v20")
    a(f"v_lshl_add_u32 v{vRQ[0]}, v22, 4, v23\nv_xor_b32 v{vRQ[1]}, 64, v{vRQ[0]}")
    a(f"v_and_b32 v20, 7, v20\nv_mul_u32_u24 v20, 96, v20\nv_lshl_add_u32 v20, v21, 3, v20\nv_lshrrev_b32 v22, 5, v17\nv_lshl_add_u32 v20, v22, 10, v20\nv_add_u32 v{vR1}, 12288, v20")
    a(f"v_and_b32 v20, 15, v17\nv_lshrrev_b32 v21, 1, v20\nv_xor_b32 v21, v21, v19\nv_mul_u32_u24 v20, 384, v20\nv_lshl_add_u32 v20, v21, 4, v20")
    a(f"v_add_u32 v{vKR[0]}, {KB}, v20\nv_xor_b32 v{vKR[1]}, 64, v{vKR[0]}")
    a(f"s_lshr_b32 s70, s4, 3\ns_mul_i32 s70, s70, 60\ns_and_b32 s71, s4, 7\ns_mul_i32 s71, s71, 6\ns_add_u32 s70, s70, s71")
    a(f"s_sub_u32 s71, s7, 12\ns_mul_i32 s71, s71, 60\ns_mul_i32 s72, s6, 6\ns_add_u32 s71, s71, s72\ns_add_u32 s71, s71, 48")
    a(f"s_cmp_lt_u32 s4, 24\ns_cselect_b32 s70, s70, s71\ns_mul_i32 s72, s5, 480\ns_add_u32 s70, s70, s72\ns_lshl_b32 s{sO}, s70, 11")
    for i in range(1, 6): a(f"s_add_u32 s{sO+i}, s{sO}, {(i//3)*240*2048+(i%3)*4096}")
    a(f"s_mul_i32 s70, s7, 3\ns_add_u32 s70, s70, s72\ns_add_u32 s70, s70, 180\ns_add_u32 s71, s70, s6\ns_lshl_b32 s{sH}, s71, 11\ns_add_u32 s{sH+1}, s{sH}, {240*2048}")
    a(f"s_add_u32 s71, s70, 2\ns_lshl_b32 s71, s71, 11\ns_lshl_b32 s70, s6, 3\ns_add_u32 s{sH+2}, s71, s70\ns_add_u32 s{sH+3}, s{sH+2}, {240*2048}")
    a(f"s_mov_b32 s{sIT}, 0\ns_mov_b32 s{sK}, 0\ns_mov_b32 s{sFB}, 0")
    if OPT.get("pf1"):
        a("s_load_dwordx2 s[56:57], s[0:1], 32\ns_load_dwordx2 s[58:59], s[0:1], 64\ns_bfe_u32 s70, s2, 0x20001\ns_lshr_b32 s71, s2, 3\ns_lshl_b32 s71, s71, 2")
        a(f"s_add_u32 s71, s71, s{sW}\ns_mul_i32 s72, s71, 15360\ns_mul_i32 s73, s70, {1536*1280}\ns_add_u32 s73, s73, s72\ns_mul_i32 s71, s71, 3840")
        a(f"s_mul_i32 s74, s70, {384*1280}\ns_add_u32 s74, s74, {24*192*1280}\ns_add_u32 s74, s74, s71\ns_waitcnt lgkmcnt(0)", srd(80, 56, "s74", 3840))
        a("s_cmp_eq_u32 s70, 3\ns_cselect_b32 s56, s58, s56\ns_cselect_b32 s57, s59, s57\ns_cselect_b32 s73, s72, s73", srd(64, 56, "s73", 15360), "s_mov_b32 s53, 0")
    for i in range(16, 208): a(f"v_mov_b32 v{i}, 0")
    for i in range(172): a(f"v_accvgpr_write_b32 a{i}, 0")
    a(W(vm="b1"))
    for i in range(3):
        b = HA(i, 0)
        a(f"v_and_b32 v{b+3}, 0xffff0000, v{b+1}\nv_lshlrev_b32 v{b+2}, 16, v{b+1}\nv_and_b32 v{b+1}, 0xffff0000, v{b}\nv_lshlrev_b32 v{b}, 16, v{b}")
        for q in (3, 2, 1, 0):
            for j in range(4): a(f"v_mul_f32 v{b+4*q+j}, {f32(CS)}, v{b+j}")
    WF = lambda n: 172 + 4 * (n % 5)
    def wrd(sl, n):
        o = []
        for p in range(2):
            if n < 12: ad, off = vRQ[(n >> 1) & 1], 16384 * sl + 6144 * p + 128 * (n >> 2) + 8 * (n & 1)
            else: ad, off = vR1, 16384 * sl + 2048 * p + 32 * (n - 12)
            o.append(I(f"ds_read_b64_tr_b16 a[{WF(n)+2*p}:{WF(n)+2*p+1}], v{ad} offset:{off}", lg=f"f{n%5}"))
        return o
    a(W(vm="w0"), "s_barrier")
    for n in range(4): a(wrd(0, n))
    a(W(lg="f0"), ts(1))
    K.block("p1", 6)
    for sl in range(4):
        mf = []; fl = {i: [] for i in range(60)}
        for n in range(15):
            for q in range(4):
                d = r("v", QA(n >> 1, q, n & 1) if n < 12 else HA(n - 12, q), 4)
                mf.append(mfma(d, r("a", WF(n), 4), r("a", 192 + 16 * sl + 4 * q, 4), d))
            rd = wrd(sl, n + 4) if n < 11 else wrd((sl + 1) % 4, n - 11)
            fl[4 * n].append(rd[0]); fl[4 * n + 1].append(rd[1]); fl[4 * n + 3].append(W(lg=f"f{(n+1)%5}"))
        for g, x in zip((6, 11, 17, 22, 23), xsld((sl + 3) % 4)): fl[g].insert(0, x)
        fl[42] += [W(vm=f"w{(sl+1)%4}"), "s_barrier"]
        for g, x in zip((41, 43, 48, 53, 54, 55, 58, 59), wdma((sl + 3) % 4)): fl[g].insert(0, x)
        if sl in (1, 2):
            kv = dma3(f"s_add_u32 m0, s{sT}, {KB if sl == 1 else VB}", vKD if sl == 1 else vVD, 20 if sl == 1 else 24, sK, "_")
            for g, x in zip((26, 27, 33, 38), kv): fl[g].insert(0, x)
        if sl == 0: fl[22].append(f"s_add_u32 s{sT}, s{sM3}, s{sK}")
        if sl == 3:
            fl[22].append(f"s_add_u32 s{sK}, s{sK}, 12288"); fl[26].append(f"s_min_u32 s{sK}, s{sK}, 36864")
            fl[30].append(f"s_add_u32 s{sIT}, s{sIT}, 1"); fl[59].insert(1, f"s_cmp_lt_u32 s{sIT}, 5")
            fl[59].append("s_cbranch_scc1 k1_p1")
        K.weave(mf, fl)
    FR = lambda s: 192 + 4 * s
    def krd(sl, f, s): return [I(f"ds_read_b128 a[{FR(s)}:{FR(s)+3}], v{vKR[f&1]} offset:{12288*sl+6144*(f//6)+128*((f%6)>>1)}", lg=f"g{s}")]
    def vrd(sl, b, s): return [I(f"ds_read_b64_tr_b16 a[{FR(s)+2*p}:{FR(s)+2*p+1}], v{vVR[b&3]} offset:{12288*sl+6144*p+128*(b>>2)}", lg=f"g{s}") for p in range(2)]
    def qk(f, s, c0):
        kb, t = f // 6, f % 6
        return [mfma(r("v", S(kb, q), 4), r("a", FR(s), 4), Q(t, q), (c0(q) if t == 0 else r("v", S(kb, q), 4))) for q in range(4)]
    def pv(b, s, pb, qs=range(4)): return [mfma(r("a", O(b, q), 4), r("a", FR(s), 4), r("v", P(pb, q), 4), r("a", O(b, q), 4)) for q in qs]
    cinit = lambda q: r("v", CI(q), 4)
    def sm(kb, q, pb):
        s = S(kb, q); E = lambda i: f"v_exp_f32 v{s+i}, v{s+i}"; A = lambda i: f"v_add_f32 {LS[q]}, {LS[q]}, v{s+i}"
        C = lambda i: f"v_cvt_pk_bf16_f32 v{P(pb,q)+2*kb+i}, v{s+2*i}, v{s+2*i+1}"
        return [E(0), E(1), A(0), E(2), A(1), E(3), C(0), A(2), A(3), C(1)]
    qcvt = lambda t: [f"v_cvt_pk_bf16_f32 v{16+32*t+i}, v{16+32*t+2*i}, v{17+32*t+2*i}" for i in range(16)]
    kdma = lambda sl: dma3(f"s_add_u32 m0, s{sM3}, {KB+12288*sl}", vKD, 20, sK, f"k{sl}") + [f"s_add_u32 s{sK}, s{sK}, 12288"]
    vdma = lambda sl: dma3(f"s_add_u32 m0, s{sM3}, {VB+12288*sl}", vVD, 24, sV, f"v{sl}") + [f"s_add_u32 s{sV}, s{sV}, 12288"]
    LEAD = 5
    def setm():
        o = [f"v_sub_f32 {MX[0]}, 0, {MX[0]}"] + xbcast(MX)
        return o + [f"v_mov_b32 v{CI(q)+j}, {MX[q]}" for q in range(4) for j in range(4)]
    def tile0(first):
        for f in range(8): a(krd(0, f, 8 + f))
        if first: a(qcvt(0))
        mf = []; fl = {i: [] for i in range(24)}
        a(W(lg="g8"))
        for f in range(6):
            mf += qk(f, 8 + f, lambda q: "0")
            if 1 <= f <= 4: fl[4 * f] += krd(0, f + 7, 8 + (f + 7) % 8)
            if first and f < 5:
                for i, x in enumerate(qcvt(f + 1)): fl[4 * f + i // 4].append(x)
            fl[4 * f + 3].append(W(lg=f"g{8+(f+1)%8}"))
        K.weave(mf, fl)
        if first:
            a(f"v_lshrrev_b32 v1, 6, v0\nv_mul_u32_u24 v1, 384, v1\nv_bfe_u32 v2, v0, 7, 2\nv_lshl_add_u32 v1, v2, 5, v1\nv_bfe_u32 v2, v0, 4, 2")
            a(f"v_lshl_add_u32 v1, v2, 3, v1\nv_add_u32 v1, {VB}, v1\nv_xor_b32 v2, 32, v1\nv_xor_b32 v3, 64, v1\nv_xor_b32 v4, 96, v1")
            if OPT.get("pf1"): a(f"v_lshlrev_b32 v{H(5)+8}, 2, v0\nbuffer_load_dword v{H(5)+9}, v{H(5)+8}, s[80:83], 0 offen")
            for i in range(172, 192): a(f"v_accvgpr_write_b32 a{i}, 0")
            for q in range(4): a(f"v_max3_f32 {MX[q]}, v{S(0,q)}, v{S(0,q)+1}, v{S(0,q)+2}\nv_max_f32 {MX[q]}, {MX[q]}, v{S(0,q)+3}")
            a(xred("v_max_f32", MX, None), setm())
        else: a("s_nop 7")
        for q in range(4): a(f"v_mov_b32 {LS[q]}, 0")
        a(f"s_mov_b32 s{sK}, 49152\ns_mov_b32 s{sV}, 36864")
        mf = []; fl = {i: [] for i in range(24)}
        for f in range(6, 12):
            mf += qk(f, 8 + f % 8, cinit)
            if f < 11: fl[4 * (f - 6)] += krd(1, f - 6, f - 6)
        for q in range(4):
            v = [f"v_add_f32 v{S(0,q)+j}, v{S(0,q)+j}, v{CI(q)}" for j in range(4)] + sm(0, q, 0)
            for i, x in enumerate(v): fl[6 * q + (i * 6) // 14].append(x)
        for f in range(6, 11): fl[4 * (f - 6) + 3].append(W(lg=f"g{8+(f+1)%8}"))
        fl[19].append("s_barrier")
        K.weave(mf, fl)
        if first:
            for q in range(4):
                for nb in range(3):
                    h = HA(nb, q)
                    for j in range(4): a(f"v_max_f32 v{h+j}, 0, v{h+j}")
                    for j in (0, 2): a(f"v_pk_mul_f32 v[{h+j}:{h+j+1}], v[{h+j}:{h+j+1}], v[{h+j}:{h+j+1}]")
                    d = HA(0, q) + 2 * nb if nb < 2 else h
                    for j in (0, 1): a(f"v_cvt_pk_bf16_f32 v{d+j}, v{h+2*j}, v{h+2*j+1}")
                a(f"buffer_store_dwordx4 v[{HA(0,q)}:{HA(0,q)+3}], v0, s[28:31], s{sH+(q>>1)} offen offset:{1024*(q&1)}")
                a(f"buffer_store_dwordx2 v[{HA(2,q)}:{HA(2,q)+1}], v0, s[28:31], s{sH+2+(q>>1)} offen offset:{1024*(q&1)}")
        else: a("s_nop 7")
        x, y = sm(1, 0, 0), sm(1, 1, 0)
        for i in range(10): a(x[i], y[i])
        a(W(lg="g0"))
    K.block("t0")
    a(ts(2), W(vm="x2"))
    tile0(True)
    a(ts(3))
    for u in (1, 2, 3, 0):
        K.block(f"p2{u}", 6 if u == 1 else None)
        mf = []; fl = {i: [] for i in range(96)}
        for f in range(24):
            mf += qk(f, f % 8, cinit) if f < 12 else pv(f - 12, f % 8, (u + 1) % 2)
            n = f + LEAD
            rd = krd(u, n, n % 8) if n < 12 else vrd((u + 3) % 4, n - 12, n % 8) if n < 24 else krd((u + 1) % 4, n - 24, n % 8)
            for i, x in enumerate(rd): fl[4 * f + i].append(x)
        b0 = 4 * (24 - LEAD) - 2
        fl[b0] += [W(vm=[f"v{u}", f"k{(u+1)%4}"]), "s_barrier"]
        for g, x in zip((77, 78, 85, 93, 94), vdma((u + 2) % 4)): fl[g].append(x)
        for g, x in zip((1, 2, 10, 18, 21), kdma((u + 3) % 4)): fl[g].append(x)
        for k in range(8):
            kb, q = (1, k + 2) if k < 2 else (0, k - 2) if k < 6 else (1, k - 6)
            for i, x in enumerate(sm(kb, q, (u + 1) % 2 if k < 2 else u % 2)): fl[12 * k + i].append(x)
        for f in range(24): fl[4 * f + 3].append(W(lg=f"g{(f+1)%8}"))
        if u == 1 and OPT.get("pf1"): fl[26].append(f"buffer_load_dword v{H(5)+9}, v{H(5)+8}, s[64:67], s53 offen"); fl[30].append("s_add_u32 s53, s53, 4096")
        if u == 3: fl[94].append(f"s_cmp_eq_u32 s{sV}, {18*12288}"); fl[95].append("s_cbranch_scc1 k1_tail")
        if u == 0: fl[95].append("s_branch k1_p21")
        K.weave(mf, fl)
    K.block("tail")
    a(ts(4))
    x, y = sm(1, 2, 1), sm(1, 3, 1)
    for i in range(10): a((vrd(3, i, (i + 5) % 16) if i < 5 else []), x[i], y[i])
    a(W(lg="g5"))
    T0 = 208
    def oep(t, q, pk):
        d = T0 + 8 * ((4 * t + q) % 6); o = [f"v_accvgpr_read_b32 v{d+j}, a{O(2*t,q)+j}" for j in range(8)]
        if pk: o += [f"v_pk_mul_f32 v[{d+j}:{d+j+1}], v[{d+j}:{d+j+1}], v[{CI(q)}:{CI(q)+1}]" for j in range(0, 8, 2)]
        else: o += [f"v_mul_f32 v{d+j}, v{d+j}, v{CI(q)}" for j in range(8)]
        o += [f"v_cvt_pk_bf16_f32 v{d+j}, v{d+2*j}, v{d+2*j+1}" for j in range(4)]
        return o + [f"buffer_store_dwordx4 v[{d}:{d+3}], v0, s[28:31], s{sO+3*(q>>1)+(t>>1)} offen offset:{2048*(t&1)+1024*(q&1)}" + (" sc1" if OPT.get("osc") else "")]
    mf = []; fl = {i: [] for i in range(48)}
    for b in range(12):
        mf += pv(b, (b + 5) % 16, 1)
        if b + 5 < 12:
            for i, z in enumerate(vrd(3, b + 5, (b + 10) % 16)): fl[4 * b + i].append(z)
    lr = xred("v_add_f32", LS, None) + [f"v_cmp_nlt_f32 vcc, {LS[0]}, v5", f"v_rcp_f32 {LS[0]}, {LS[0]}", "s_cmp_lg_u64 vcc, 0", "s_cselect_b32 s70, 1, 0",
          "v_mov_b32 v6, s70", I("ds_write_b32 v7, v6", lg="fl")] + xbcast(LS) + [f"v_mov_b32 v{CI(q)+j}, {LS[q]}" for q in range(4) for j in range(2)]
    lr = [f"v_mov_b32 v5, {f32(2.0**40)}", f"s_lshl_b32 s70, s{sW}, 2", "v_mov_b32 v7, s70"] + lr
    for i, z in enumerate(lr): fl[i // 3].append(z)
    NOV = 5
    ov = [z for k in range(NOV) for z in oep(k // 4, k % 4, False)]
    g0 = (len(lr) + 2) // 3
    assert g0 >= 12
    for i, z in enumerate(ov): fl[g0 + (i * (48 - g0)) // len(ov)].append(z)
    for b in range(11): fl[4 * b + 3].append(W(lg=f"g{(b+6)%16}"))
    K.weave(mf, fl)
    for k in range(NOV, 24):
        a(oep(k // 4, k % 4, True))
        if k == 20: a(W(lg="fl"), "s_barrier", "v_mov_b32 v7, 0", I(f"ds_read_b128 v[{S(0,0)}:{S(0,0)+3}], v7", lg="fr"))
    s = S(0, 0)
    a(W(lg="fr"), f"v_or3_b32 v{s}, v{s}, v{s+1}, v{s+2}\nv_or_b32 v{s}, v{s}, v{s+3}\ns_nop 0\nv_readfirstlane_b32 s70, v{s}")
    a(f"s_andn2_b32 s70, s70, s{sFB}\ns_cbranch_scc1 k1_fb", tsend(1, 6, 62))
    K.block("end"); a("s_endpgm")
    K.block("fb")
    a(W(full=True), f"s_barrier\ns_mov_b32 s{sFB}, 1\ns_mov_b32 s{sK}, 0")
    for q in range(4): a(f"v_mov_b32 {MX[q]}, 0xff800000")
    K.block("fbl")
    a(nopm(kdma(0)), W(full=True), "s_barrier")
    for f in range(12): a(krd(0, f, f))
    a(W(full=True), "s_barrier")
    for f in range(12): a(qk(f, f, lambda q: "0"))
    a("s_nop 7\ns_nop 7")
    for kb in range(2):
        for q in range(4):
            for j in (0, 2): a(f"v_max3_f32 {MX[q]}, {MX[q]}, v{S(kb,q)+j}, v{S(kb,q)+j+1}")
    a(f"s_cmp_lt_u32 s{sK}, 196608\ns_cbranch_scc1 k1_fbl")
    K.block("fb2")
    a(xred("v_max_f32", MX, None), setm(), f"s_mov_b32 s{sK}, 0\ns_mov_b32 s{sV}, 0")
    for sl in range(4): a(nopm(kdma(sl)), nopm(vdma(sl)))
    for i in range(192): a(f"v_accvgpr_write_b32 a{i}, 0")
    a(W(full=True), "s_barrier")
    tile0(False)
    a("s_branch k1_p21")
    main = ["p21", "p22", "p23", "p20"] * 3 + ["p21", "p22", "p23", "tail"]
    K.blocks["_kv"] = [I("", vm=t) for t in ("k0", "k1", "k2", "k3", "v0", "v1", "v2", "v3")] + [W(full=True)]
    K.traces = [["_kv", "start"] + ["p1"] * 5 + ["t0"] + main + ["fb"] + ["fbl"] * 2 + ["fb2"] + main]
    return K

def k2():
    K = Kernel("k2_kernel", 304, 168); a = K.a
    AC = lambda rb, n: 16 + (rb * 10 + n) * 4
    BF = lambda st, rb: (st % 12) * 8 + rb * 4
    AF = lambda f: 96 + 4 * (f % 10)
    vD, vR, vB, vO, XR, BR, TM = (1, 2, 3, 4, 5), (6, 7, 8, 9), (10, 11), 12, 96, 106, 116
    sW, sKS, sM, sD, sB, sIT, sE, sC = 32, 33, 34, 35, 36, 37, 40, 48
    K.block("start")
    a("s_cmp_ge_u32 s2, 256\ns_cbranch_scc1 k2_end", ts(0))
    a("s_load_dwordx2 s[56:57], s[0:1], 0\ns_load_dwordx2 s[58:59], s[0:1], 32\ns_load_dwordx4 s[60:63], s[0:1], 64\ns_load_dwordx2 s[64:65], s[0:1], 80\ns_load_dwordx2 s[66:67], s[0:1], 96")
    a(f"v_lshrrev_b32 v16, 6, v0\nv_and_b32 v17, 63, v0\ns_nop 0\nv_readfirstlane_b32 s{sW}, v16")
    a(f"s_bfe_u32 s{sKS}, s2, 0x20001\ns_and_b32 s3, s2, 1\ns_lshl_b32 s3, s3, 3\ns_lshr_b32 s4, s2, 5\ns_add_u32 s3, s3, s4\ns_bfe_u32 s4, s2, 0x20003")
    a(f"s_and_b32 s5, s{sKS}, 1\ns_lshr_b32 s6, s{sKS}, 1\ns_mul_i32 s7, s5, {0 if OPT.get('k2x',0)&64 else 10}\ns_mul_i32 s{sM}, s{sW}, 5120")
    a("v_mul_u32_u24 v18, 320, v16\nv_add_u32 v18, v18, v17\nv_lshlrev_b32 v0, 4, v17")
    for i in range(5):
        a(f"v_add_u32 v19, {64*i}, v18", divc("v20", "v19", 20, 1280), "v_mul_u32_u24 v21, 20, v20\nv_sub_u32 v21, v19, v21")
        a("v_lshrrev_b32 v22, 1, v20\nv_and_b32 v22, 2, v22\nv_xor_b32 v21, v21, v22\nv_add_u32 v21, s7, v21\nv_subrev_u32 v22, 20, v21\nv_min_u32 v21, v21, v22")
        a(f"v_mul_u32_u24 v20, 1280, v20\nv_lshl_add_u32 v20, v21, 4, v20\nv_subrev_u32 v{vD[i]}, {1024*(i%4)}, v20")
    a(f"s_lshl_b32 s68, s6, 10\nv_add_u32 v{vB[0]}, s68, v0\nv_xor_b32 v{vB[1]}, 1024, v{vB[0]}")
    a(f"s_mul_i32 s68, s4, 320\ns_mul_i32 s69, s{sKS}, {1536*1280}\ns_add_u32 s69, s69, s68\ns_mul_i32 s70, s{sKS}, {384*1280}\ns_add_u32 s70, s70, {24*192*1280}\ns_add_u32 s70, s70, s68")
    a(f"s_lshl_b32 s71, s3, 2\ns_add_u32 s71, s71, s{sW}\ns_mul_i32 s72, s71, 240\ns_mul_i32 s73, s{sKS}, 60\ns_add_u32 s72, s72, s73\ns_lshl_b32 s72, s72, 11\ns_add_u32 s72, s72, {AM}")
    a("s_waitcnt lgkmcnt(0)")
    a(f"s_cmp_eq_u32 s{sKS}, 3\ns_cselect_b32 s74, s60, s58\ns_cselect_b32 s75, s61, s59\ns_cselect_b32 s69, s68, s69")
    a(srd(8, 74, "s69", 0), f"s_sub_u32 s10, {1536*1280}, s68", srd(12, 58, "s70", 0), f"s_sub_u32 s14, {384*1280}, s68", srd(16, 66, "s72", 60 * 2048))
    if OPT.get("k2x", 0) & 128: a("s_mov_b32 s10, 0\ns_mov_b32 s14, 0\ns_mov_b32 s18, 0")
    a(f"s_mov_b32 s{sD}, 0\ns_mov_b32 s{sB}, 0\ns_mov_b32 s{sIT}, {-OPT.get('k2n',0)}")
    def bld(sl): return [I(f"buffer_load_dwordx4 a[{BF(2*sl+sg,rb)}:{BF(2*sl+sg,rb)+3}], v{vB[rb]}, s[16:19], s{sB} offen offset:{2048*sg}", vm="_") for sg in range(2) for rb in range(2)] + [f"s_add_u32 s{sB}, s{sB}, {0 if OPT.get('k2x',0)&1 else 4096}"]
    def wdma(sl):
        d = [I(f"buffer_load_dwordx4 v{vD[i]}, s[8:11], s{sD} offen offset:{1024*(i%4)} lds", vm=f"w{sl}") for i in range(5)]
        return [f"s_add_u32 m0, s{sM}, {20480*sl}"] + d[:4] + [f"s_add_u32 m0, s{sM}, {20480*sl+4096}", d[4], f"s_add_u32 s{sD}, s{sD}, {0 if OPT.get('k2x',0)&2 else 64*1280}"]
    for sl in range(5):
        d = wdma(sl); a(d[0], bld(sl), d[1:5])
        if sl < 4: a(d[5], "s_nop 0", d[6:])
    a(srd(20, 56, 0, 2048 * 1280), srd(24, 64, 0, 2048 * 1280), srd(28, 62, 0, 1280), srd(76, 66, EX, EXSZ), srd(80, 66, CNT, 32768))
    a("v_lshrrev_b32 v19, 2, v17\nv_mul_u32_u24 v19, 320, v19\nv_and_b32 v20, 3, v17\nv_lshl_add_u32 v19, v20, 3, v19\nv_bfe_u32 v20, v17, 4, 1")
    a(f"v_lshl_add_u32 v{vR[0]}, v20, 5, v19\nv_xor_b32 v20, 1, v20\nv_lshl_add_u32 v{vR[1]}, v20, 5, v19\nv_add_u32 v{vR[2]}, 61440, v{vR[0]}\nv_add_u32 v{vR[3]}, 61440, v{vR[1]}")
    a("s_mul_i32 s69, s5, 160\ns_add_u32 s69, s69, s68\nv_lshrrev_b32 v19, 4, v17\nv_lshlrev_b32 v19, 3, v19\nv_add_u32 v13, s69, v19")
    a(f"s_lshl_b32 s69, s71, 1\ns_add_u32 s69, s69, s6\ns_mul_i32 s69, s69, {16*1280}\nv_and_b32 v20, 15, v17\nv_mul_u32_u24 v20, 1280, v20\nv_add3_u32 v{vO}, v20, v13, s69")
    a(f"s_lshl_b32 s69, s3, 2\ns_add_u32 s69, s69, s4\ns_lshl_b32 s69, s69, 2\ns_add_u32 s69, s69, s{sW}\ns_lshl_b32 s{sC}, s69, 7\ns_mul_i32 s69, s69, {16*3072}")
    for d in range(4): a(f"s_xor_b32 s70, s{sKS}, {d}\ns_mul_i32 s70, s70, {4*3072}\ns_add_u32 s{sE+d}, s69, s70\ns_add_u32 s{sE+4+d}, s{sE+d}, {3072*d}")
    for i in range(16, 96): a(f"v_mov_b32 v{i}, 0")
    def ard(sl, f):
        sg, n = f // 10, f % 10
        return [I(f"ds_read_b64_tr_b16 a[{AF(f)+2*p}:{AF(f)+2*p+1}], v{vR[(n&1)+2*(sl//3)]} offset:{20480*(sl%3)+10240*sg+5120*p+64*(n>>1)}", lg=f"f{f%10}") for p in range(2)]
    a(W(vm="w0"), "s_barrier")
    for f in range(7): a(ard(0, f))
    a(W(lg="f1"), ts(1))
    K.block("loop", 6)
    for sl in range(6):
        mf = []; fl = {i: [] for i in range(40)}
        for f in range(20):
            for rb in range(2):
                d = r("v", AC(rb, f % 10), 4)
                mf.append(mfma(d, r("a", AF(f), 4), r("a", BF(2 * sl + f // 10, rb), 4), d))
            rd = ard(sl, f + 7) if f < 13 else ard((sl + 1) % 6, f - 13)
            fl[2 * f].append(rd[0]); fl[2 * f + 1].append(rd[1])
        X = OPT.get("k2x", 0)
        if not X & 8:
            for g, x in zip((1, 4, 5), wdma((sl + 4) % 6)[5:]): fl[g].append(x)
        if not X & 4:
            for g, x in zip((8, 13, 17, 22, 24), bld((sl + 5) % 6)): fl[g].append(x)
        if not X & 8: fl[25] += [W(vm=f"w{(sl+1)%6}")]
        if not X & 16: fl[25] += ["s_barrier"]
        if not X & 8:
            for g, x in zip((24, 26, 30, 34, 38), wdma((sl + 5) % 6)[:5]): fl[g].append(x)
        PL = OPT.get("pl", 0)
        isv = lambda x: isinstance(x, I) and x.t.startswith("buffer")
        for g in range(40):
            if any(isv(x) for x in fl[g]):
                if PL == 1: fl[g].sort(key=lambda x: not isv(x))
                if PL == 2: fl[g + 1].insert(0, fl[g].pop(0))
                if PL == 3 and g != 26: fl[g - 1].insert(1, fl[g].pop(0))
                if PL == 4 and g != 38:
                    x0, x1 = fl[g].pop(0), fl[g + 1].pop(0); y = fl[g + 2].pop(0)
                    fl[g + 2][0:0] = [x0, x1]; fl[g + 3].insert(0, y)
        for f in range(1, 20, 2): fl[2 * f + 1].append(W(lg=f"f{(f+2)%10}"))
        if sl == 1:
            sw = [f"s_cmp_eq_u32 s{sIT}, 3"] + [f"s_cselect_b32 s{8+i}, s{12+i}, s{8+i}" for i in range(3)] + [f"s_cselect_b32 s{sD}, 0, s{sD}", f"s_add_u32 s{sIT}, s{sIT}, 1"]
            for g, x in zip((9, 10, 12, 14, 16, 18), sw): fl[g].append(x)
        if sl == 5: fl[37].append(f"s_cmp_lt_i32 s{sIT}, 4"); fl[39].append("s_cbranch_scc1 k2_loop")
        K.weave(mf, fl)
    K.block("mid")
    a(f"s_cmp_eq_u32 s{sIT}, 5\ns_cbranch_scc1 k2_fin")
    for n in range(5):
        a(I(f"buffer_load_dwordx2 v[{XR+2*n}:{XR+2*n+1}], v{vO}, s[20:23], 0 offen offset:{32*n}", vm="x"))
        a(I(f"buffer_load_dwordx2 v[{BR+2*n}:{BR+2*n+1}], v13, s[28:31], 0 offen offset:{32*n}", vm="x"))
    a(f"s_cmp_lg_u32 s{sKS}, 3\ns_cbranch_scc1 k2_loop")
    def send(d, so):
        t = TM + 12 * d; s = AC(d >> 1, 5 * (d & 1))
        for j in range(10):
            a(f"v_cvt_pk_bf16_f32 v{t+j}, v{s+2*j}, v{s+2*j+1}")
            if j in (3, 7, 9): a(f"buffer_store_dwordx4 v[{t+(j&12)}:{t+(j&12)+3}], v0, s[76:79], s{so} offen offset:{256*(j&12)} sc1")
    K.block("fdump")
    for d in (0, 2, 1, 3): send(d, sE + d)
    for i in range(16, 96): a(f"v_mov_b32 v{i}, 0")
    a("s_nop 0\ns_branch k2_loop")
    K.block("fin")
    a(ts(2))
    for d in (2, 1, 3): send(d, sE + 4 + d)
    XF, BFv = AC(0, 5), AC(1, 0)
    a(W(vm="x"))
    for src, dst in ((XR, XF), (BR, BFv)):
        for j in range(10): a(f"v_lshlrev_b32 v{dst+2*j}, 16, v{src+j}\nv_and_b32 v{dst+2*j+1}, 0xffff0000, v{src+j}")
    a(f"v_mov_b32 v14, 1\nv_mov_b32 v15, 0\ns_mov_b64 exec, 1\ns_mov_b32 s71, 0", W(full=True), f"buffer_atomic_add v14, v15, s[80:83], s{sC} offen sc1")
    a(ts(3))
    K.block("poll")
    a(f"buffer_load_dword v14, v15, s[80:83], s{sC} offen sc1", W(full=True), "v_readfirstlane_b32 s70, v14\ns_add_u32 s71, s71, 1\ns_lshr_b32 s72, s71, 18\ns_and_b32 s72, s72, 4\ns_or_b32 s70, s70, s72\ns_cmp_lt_u32 s70, 4\ns_cbranch_scc1 k2_poll")
    K.block("out")
    a("s_mov_b64 exec, -1\ns_barrier", ts(4))
    for d in range(4):
        for j in range(3): a(I(f"buffer_load_dwordx4 v[{TM+12*d+4*j}:{TM+12*d+4*j+3}], v0, s[76:79], s{sE} offen offset:{1024*j} sc1", vm=f"e{d}"))
        a(f"s_add_u32 s{sE}, s{sE}, 3072")
    G = AC(1, 5)
    a(f"s_mov_b32 s70, {f32(1/CS**2)}\ns_mov_b32 s71, {f32(-math.log2(math.e))}", W(vm="e0"))
    for j in range(10): a(f"v_lshlrev_b32 v{G+2*j}, 16, v{TM+j}\nv_and_b32 v{G+2*j+1}, 0xffff0000, v{TM+j}")
    for j in range(20): a(f"v_fma_f32 v{BFv+j}, v{G+j}, s70, v{BFv+j}")
    for j in range(20): a(f"v_mul_f32 v{G+j}, s71, v{BFv+j}")
    for j in range(20): a(f"v_exp_f32 v{G+j}, v{G+j}")
    for j in range(20): a(f"v_add_f32 v{G+j}, 1.0, v{G+j}")
    for j in range(20): a(f"v_rcp_f32 v{G+j}, v{G+j}")
    for j in range(20): a(f"v_mul_f32 v{G+j}, v{G+j}, v{BFv+j}")
    for d in (1, 2, 3):
        a(W(vm=f"e{d}"))
        for j in range(10):
            a(f"v_lshlrev_b32 v14, 16, v{TM+12*d+j}\nv_and_b32 v15, 0xffff0000, v{TM+12*d+j}\nv_pk_add_f32 v[{16+2*j}:{17+2*j}], v[{16+2*j}:{17+2*j}], v[14:15]")
    for n in range(5):
        for j in (4 * n, 4 * n + 2):
            a(f"v_pk_fma_f32 v[{16+j}:{17+j}], v[{16+j}:{17+j}], v[{G+j}:{G+j+1}], v[{XF+j}:{XF+j+1}]\nv_cvt_pk_bf16_f32 v{TM+j//2}, v{16+j}, v{17+j}")
        a(f"buffer_store_dwordx2 v[{TM+2*n}:{TM+2*n+1}], v{vO}, s[24:27], 0 offen offset:{32*n}")
    a(tsend(2, 6, 66))
    K.block("end"); a("s_endpgm")
    K.traces = [["start"] + ["loop"] * 4 + ["mid"] + ["loop", "fin", "poll", "out"], ["start"] + ["loop"] * 4 + ["mid", "fdump", "loop", "fin", "poll", "out"]]
    return K

def build(path):
    ref = open(f"cdna_kernels/{NAME}.s.ref").read().split("\n")
    hdr = [l for l in ref if l.startswith(";") and "@launch" not in l]
    ks = [(k0(), 256 if OPT.get("pf0") else 128, 2048), (k1(), 256, 163840), (k2(), 256, 122880)]
    L = hdr + [f"; @launch kernel={k.name} grid=({g},1,1) block=(256,1,1) lds={l}" for k, g, l in ks]
    L += ['.amdgcn_target "amdgcn-amd-amdhsa--gfx950"', ".text"] + [k.text() for k, _, _ in ks]
    L += ['.section .rodata,"a"'] + [k.desc() for k, _, _ in ks]
    open(path, "w").write("\n".join(L) + "\n")
if __name__ == "__main__":
    for kv in sys.argv[2:]:
        k, v = kv.split("="); OPT[k] = int(v)
    build(sys.argv[1] if len(sys.argv) > 1 else f"cdna_kernels/{NAME}.s")
```
